```python
import torch

def _softmax(x, axis=-1):
    return torch.softmax(x, dim=axis)
def _gelu(x):
    return torch.nn.functional.gelu(x, approximate="tanh")
def _silu(x):
    return torch.nn.functional.silu(x)
def _sigmoid(x):
    return torch.sigmoid(x)
def _layernorm(x, axis=-1, eps=1e-5):
    m = x.mean(dim=axis, keepdim=True)
    v = x.var(dim=axis, keepdim=True, unbiased=False)
    return (x - m) / torch.sqrt(v + eps)
def _scatter_add(tgt, idx, src, axis=0):
    return tgt.clone().index_add_(axis, idx, src)
def _segment_sum(src, seg, n):
    out = torch.zeros((n,) + src.shape[1:], dtype=src.dtype)
    return out.index_add_(0, seg, src)
def _pad(x, pw):
    flat = tuple(v for pair in reversed(pw) for v in pair)
    return torch.nn.functional.pad(x, flat)

kernel_name = 'sequential_preLN__sliding_block_cached__mixer_token_mlp__decode'

def setup_inputs():

    _w = (lambda a: (lambda t: t.to(torch.bfloat16) if t.is_floating_point() else t)(torch.as_tensor(a)))
    def _A_setup():
        B, Sq, D = 1, 1, 640
        Hq, Hkv, Sk, Dh = 32, 32, 16384, 192
        assert Hq % Hkv == 0, (Hq, Hkv)
        return {
            "x": _w((lambda *s: torch.randn(*s, dtype=torch.bfloat16) * 0.2)(B, Sq, D)),
            "k_cache": _w((lambda *s: torch.randn(*s, dtype=torch.bfloat16) * 1.6)(B, Hkv, Sk, Dh)),
            "v_cache": _w((lambda *s: torch.randn(*s, dtype=torch.bfloat16) * 3.2)(B, Hkv, Sk, Dh)),
            "wq": _w((lambda *s: torch.randn(*s, dtype=torch.bfloat16) * 1.6)(D, Hq * Dh) * (D ** -0.5)),
            "wo": _w((lambda *s: torch.randn(*s, dtype=torch.bfloat16) * 3.2)(Hq * Dh, D) * ((Hq * Dh) ** -0.5)),
        }
    _A_in = _A_setup()

    def _B_setup():
        B, S, D, F = 1, 1, 640, 1536
        return {
            "x": _w((lambda *s: torch.randn(*s, dtype=torch.bfloat16) * 0.2)(B, S, D)),
            "w1": _w((lambda *s: torch.randn(*s, dtype=torch.bfloat16) * 3.2)(S, F) * (S ** -0.5)),
            "b1": _w((lambda *s: torch.randn(*s, dtype=torch.bfloat16) * 3.2)(F) * 0.02),
            "w2": _w((lambda *s: torch.randn(*s, dtype=torch.bfloat16) * 3.2)(F, S) * (F ** -0.5)),
            "b2": _w((lambda *s: torch.randn(*s, dtype=torch.bfloat16) * 3.2)(S) * 0.02),
        }
    _B_in = _B_setup()

    return {
        "A_x": _A_in["x"],
        "A_k_cache": _A_in["k_cache"],
        "A_v_cache": _A_in["v_cache"],
        "A_wq": _A_in["wq"],
        "A_wo": _A_in["wo"],
        "B_x": _B_in["x"],
        "B_w1": _B_in["w1"],
        "B_b1": _B_in["b1"],
        "B_w2": _B_in["w2"],
        "B_b2": _B_in["b2"],
    }

def reference(A_x, A_k_cache, A_v_cache, A_wq, A_wo, B_x, B_w1, B_b1, B_w2, B_b2):
    def _A_ref(x, k_cache, v_cache, wq, wo):
        B, Sq, D = x.shape
        Hq, Dh = 32, 192
        Hkv, Sk = k_cache.shape[1], k_cache.shape[2]
        W = min(4096, max(256, Sk // 4))
        rep = Hq // Hkv
        q = (lambda x, *d: x.permute(*d))((x @ wq).reshape(B, Sq, Hq, Dh), 0, 2, 1, 3)
        k = (lambda x, n, axis: torch.repeat_interleave(x, n, dim=axis))(k_cache[:, :, Sk - W:, :], rep, axis=1)
        v = (lambda x, n, axis: torch.repeat_interleave(x, n, dim=axis))(v_cache[:, :, Sk - W:, :], rep, axis=1)
        scores = torch.einsum("bhqd,bhkd->bhqk", q, k) * (Dh ** -0.5)
        p = _softmax(scores, axis=-1)
        o = torch.einsum("bhqk,bhkd->bhqd", p, v)
        return (lambda x, *d: x.permute(*d))(o, 0, 2, 1, 3).reshape(B, Sq, Hq * Dh) @ wo

    def _B_ref(x, w1, b1, w2, b2):
        B, S, D = x.shape
        h = _layernorm(x, axis=-1)
        u = torch.einsum("bsd,sf->bdf", h, w1) + b1
        u = _gelu(u)
        y = torch.einsum("bdf,fs->bds", u, w2) + b2
        return (lambda x, *d: x.permute(*d))(y, 0, 2, 1)

    x = A_x
    h = x + _A_ref(_layernorm(x, axis=-1), A_k_cache, A_v_cache, A_wq, A_wo)
    h2 = h + _B_ref(_layernorm(h, axis=-1), B_w1, B_b1, B_w2, B_b2)
    return h2
```

```python
import re

TRANS = ('v_exp_f32', 'v_log_f32', 'v_rcp_f32', 'v_rsq_f32', 'v_sqrt_f32')


def regs_of(tok):
    tok = tok.strip()
    tok = tok.lstrip('-').strip('|')
    m = re.fullmatch(r'([vs])(\d+)', tok)
    if m:
        return [(m.group(1), int(m.group(2)))]
    m = re.fullmatch(r'([vs])\[(\d+):(\d+)\]', tok)
    if m:
        return [(m.group(1), i) for i in range(int(m.group(2)), int(m.group(3)) + 1)]
    if tok == 'vcc':
        return [('vcc', 0)]
    return []


class Ins:
    def __init__(self, text):
        self.text = text
        t = text.split(';')[0].strip()
        self.is_label = t.endswith(':')
        self.op = t.split()[0] if t else ''
        rest = t[len(self.op):].strip()
        ops = [o.strip() for o in re.split(r',(?![^\[]*\])', rest)] if rest else []
        if ops:
            ops[-1] = ops[-1].split()[0] if ops[-1].split() else ops[-1]
        self.ops = ops
        op = self.op
        self.valu = op.startswith('v_')
        self.vmem = op.startswith('buffer_') or op.startswith('global_')
        self.ds = op.startswith('ds_')
        self.dpp = self.valu and ('_dpp' in op)
        self.perml = op.startswith('v_permlane')
        self.dot = op.startswith('v_dot')
        self.trans = op.replace('_e32', '').replace('_e64', '') in TRANS
        self.w, self.r = [], []
        if self.valu:
            if self.perml:
                self.w = regs_of(ops[0]) + regs_of(ops[1])
                self.r = list(self.w)
            else:
                self.w = regs_of(ops[0])
                for o in ops[1:]:
                    self.r += regs_of(o)
                if op.startswith('v_dot2c') or op.startswith('v_fmac') or op.startswith('v_writelane') or self.dpp:
                    self.r += regs_of(ops[0])
        elif self.vmem:
            if 'load' in op:
                self.w = regs_of(ops[0])
                for o in ops[1:]:
                    self.r += regs_of(o)
            else:
                for o in ops:
                    self.r += regs_of(o)
        elif self.ds:
            if 'read' in op:
                self.w = regs_of(ops[0])
                for o in ops[1:]:
                    self.r += regs_of(o)
            else:
                for o in ops:
                    self.r += regs_of(o)
        self.states = 1
        if op == 's_nop':
            self.states = int(ops[0]) + 1
        if self.is_label or not op or op.startswith('.'):
            self.states = 0


def need(p, c):
    n = 0
    pw = set(p.w)
    if p.valu:
        vw = {x for x in pw if x[0] == 'v'}
        sw = pw - vw
        if c.valu:
            cr = set(c.r)
            if vw & cr:
                if c.dpp or c.perml:
                    n = max(n, 2)
                if c.op.startswith('v_readlane') or c.op.startswith('v_readfirstlane'):
                    n = max(n, 1)
                if p.trans:
                    n = max(n, 1)
            if sw & cr:
                n = max(n, 2)
                if c.op.startswith('v_readlane') or c.op.startswith('v_writelane'):
                    n = max(n, 4)
            if p.dot:
                if c.op == p.op:
                    ab = set(regs_of(c.ops[1]) + regs_of(c.ops[2]))
                    if vw & ab:
                        n = max(n, 3)
                elif vw & (cr | set(c.w)):
                    n = max(n, 3)
        if c.vmem and (sw & set(c.r)):
            n = max(n, 5)
        if (c.vmem or c.ds) and p.dot and (vw & set(c.r)):
            n = max(n, 3)
        if (c.vmem or c.ds) and p.trans and (vw & set(c.r)):
            n = max(n, 1)
    if p.vmem and 'store' in p.op and ('x4' in p.op or 'x3' in p.op):
        data = set(regs_of(p.ops[0]))
        if data & set(c.w):
            n = max(n, 2)
    return n


class Asm:
    def __init__(self):
        self.ins = []
        self.vm = []

    def e(self, text, tag=None):
        for line in text.strip().split('\n'):
            line = line.strip()
            if not line:
                continue
            c = Ins(line)
            if c.states:
                dist = 0
                pad = 0
                for p in reversed(self.ins):
                    if dist >= 5:
                        break
                    if p.states:
                        pad = max(pad, need(p, c) - dist)
                    dist += p.states
                if pad > 0:
                    self.ins.append(Ins('s_nop %d' % (pad - 1)))
            self.ins.append(c)
            if c.vmem:
                self.vm.append(tag)

    def vwait(self, tag):
        idx = max(i for i, t in enumerate(self.vm) if t == tag)
        n = len(self.vm) - 1 - idx
        assert n <= 63, n
        self.e('s_waitcnt vmcnt(%d)' % n)
        self.vm = self.vm[idx + 1:]

    def vwait0(self):
        self.e('s_waitcnt vmcnt(0)')
        self.vm = []

    def text(self):
        out = []
        for i in self.ins:
            out.append(i.text if i.is_label else '    ' + i.text)
        return '\n'.join(out) + '\n'
```

```python
import sys, struct, os
sys.path.insert(0, os.path.dirname(os.path.abspath(__file__)))
from asmlib import Asm

NAME = 'sequential_preLN__sliding_block_cached__mixer_token_mlp__decode'


def f2u(x):
    return '0x%08x' % struct.unpack('<I', struct.pack('<f', x))[0]


LOG2E = 1.4426950408889634
QX, OX, YX, HX, TS = 0x1000, 0x50000, 0xA0000, 0xB0000, 0xC0000
WS_SIZE = 0x100000
L_QP = 0
L_QB = 16896
L_ML = 17408
L_OP = 17920
L_YP = 24064
L_HN = 26112
L_H = 28928
L_RED = 31744
LDS_SIZE = 32768
sW, sH, sS = 3, 12, 13
SX, SK, SV, SWQ, SWO, SWS, SW1, SB1, SW2, SOUT, SB2 = 44, 48, 52, 56, 60, 64, 68, 72, 76, 80, 84
T0, sE = 88, 92
sCNT, sA, sB, sC = 93, 94, 95, 96
sR, sCB = 14, 15
KV, WB, QR, ACC, SC = 8, 104, 120, 132, 156
TMP = 164
NV = 168
DP = 'row_mask:0xf bank_mask:0xf'


def srd(n):
    return 's[%d:%d]' % (n, n + 3)


def vr(a, n):
    return 'v[%d:%d]' % (a, a + n - 1) if n > 1 else 'v%d' % a


def gen(P):
    a = Asm()
    e = a.e
    NT = ' nt' if P.get('nt', 1) else ''
    NTW = ' nt' if P.get('ntw', 1) else ''
    NPRE = P.get('npre', 2)
    SPIN = P.get('spin', 1 << 20)
    STAMP = P.get('stamp', 0)
    SLP = P.get('sleep', 1)
    stamps = []

    def stamp(name):
        if STAMP:
            r = 16 + 2 * len(stamps)
            assert r <= 40
            e('s_memrealtime s[%d:%d]' % (r, r + 1))
            stamps.append(name)

    def dump_stamps(slot):
        if not STAMP:
            return
        e('s_waitcnt lgkmcnt(0)')
        e('s_mov_b64 exec, -1')
        e('v_mov_b32 v4, 0')
        for i in range(len(stamps)):
            e('v_writelane_b32 v4, s%d, %d' % (16 + 2 * i, i))
        e('s_lshl_b32 s%d, s2, 7' % sA)
        e('s_add_u32 s%d, s%d, %d' % (sA, sA, TS + slot * 64))
        e('v_lshlrev_b32 v5, 2, v1')
        e('s_mov_b64 exec, 0xffff')
        e('buffer_store_dword v4, v5, %s, s%d offen' % (srd(SWS), sA))
        print('stamps slot', slot, stamps, file=sys.stderr)

    def allred(regs, op, steps, tmp):
        for st in steps:
            if st in (1, 2, 4, 8):
                ctl = {1: 'quad_perm:[1,0,3,2]', 2: 'quad_perm:[2,3,0,1]', 4: 'row_half_mirror', 8: 'row_ror:8'}[st]
                for r in regs:
                    e('%s_dpp v%d, v%d, v%d %s %s' % (op, r, r, r, ctl, DP))
            else:
                for i, r in enumerate(regs):
                    e('v_mov_b32 v%d, v%d' % (tmp + i, r))
                for i, r in enumerate(regs):
                    e('v_permlane%d_swap_b32 v%d, v%d' % (st, r, tmp + i))
                for i, r in enumerate(regs):
                    e('%s v%d, v%d, v%d' % (op, r, r, tmp + i))

    def tagins(r, vmask):
        for k in range(4):
            e('v_and_or_b32 v%d, v%d, v%d, s%d' % (r + k, r + k, vmask, T0 + k))

    def tagchk(rs, t):
        for n, r in enumerate(rs):
            for k in range(4):
                e('v_xor_b32 v%d, s%d, v%d' % (t + 1 + k if n else t + k, T0 + k, r + k))
            if n == 0:
                e('v_or3_b32 v%d, v%d, v%d, v%d' % (t, t, t + 1, t + 2))
                e('v_or_b32 v%d, v%d, v%d' % (t, t, t + 3))
            else:
                e('v_or3_b32 v%d, v%d, v%d, v%d' % (t, t, t + 1, t + 2))
                e('v_or3_b32 v%d, v%d, v%d, v%d' % (t, t, t + 3, t + 4))
        e('v_and_b32 v%d, 0x7ff, v%d' % (t, t))
        e('v_cmp_ne_u32 vcc, 0, v%d' % t)

    def poll(name, loads, rs, t, sleep=SLP):
        e('s_mov_b32 s%d, %d' % (sCNT, SPIN))
        e('%s_poll:' % name)
        for l in loads:
            e(l)
        a.vwait0()
        tagchk(rs, t)
        e('s_cbranch_vccz %s_ok' % name)
        if sleep:
            e('s_sleep %d' % sleep)
        e('s_sub_u32 s%d, s%d, 1' % (sCNT, sCNT))
        e('s_cmp_lg_u32 s%d, 0' % sCNT)
        e('s_cbranch_scc1 %s_poll' % name)
        e('%s_ok:' % name)

    def tags():
        e('s_waitcnt lgkmcnt(0)')
        e('s_and_b32 s%d, s%d, 0x7ff' % (T0, sE))
        e('s_xor_b32 s%d, s%d, 0x2a5' % (T0 + 1, T0))
        e('s_lshr_b32 s%d, s%d, 11' % (T0 + 2, sE))
        e('s_and_b32 s%d, s%d, 0x7ff' % (T0 + 2, T0 + 2))
        e('s_lshr_b32 s%d, s%d, 22' % (T0 + 3, sE))
        e('s_xor_b32 s%d, s%d, 0x4d3' % (T0 + 3, T0 + 3))

    def ln_stats(s1, s2, t):
        e('v_mul_f32 v%d, %s, v%d' % (s1, f2u(1.0 / 640), s1))
        e('v_mul_f32 v%d, %s, v%d' % (s2, f2u(1.0 / 640), s2))
        e('v_fma_f32 v%d, -v%d, v%d, v%d' % (s2, s1, s1, s2))
        e('v_max_f32 v%d, 0, v%d' % (s2, s2))
        e('v_cvt_pk_bf16_f32 v%d, 0, v%d' % (s2, s2))
        e('v_add_f32 v%d, %s, v%d' % (s2, f2u(1e-5), s2))
        e('v_cvt_pk_bf16_f32 v%d, 0, v%d' % (s2, s2))
        e('v_sqrt_f32 v%d, v%d' % (s2, s2))
        e('v_cvt_pk_bf16_f32 v%d, 0, v%d' % (s1, s1))
        e('v_cvt_pk_bf16_f32 v%d, 0, v%d' % (s2, s2))
        e('v_rcp_f32 v%d, v%d' % (s2, s2))

    e('s_cmp_ge_u32 s2, 0x100')
    e('s_cbranch_scc1 L_end')
    e('s_load_dwordx16 s[16:31], s[0:1], 0')
    e('s_load_dwordx8 s[32:39], s[0:1], 64')
    e('s_load_dwordx2 s[40:41], s[0:1], 96')
    e('v_and_b32 v1, 63, v0')
    e('v_lshrrev_b32 v3, 6, v0')
    e('v_readfirstlane_b32 s%d, v3' % sW)
    if P.get('xcdmap', 0):
        e('s_and_b32 s%d, s2, 7' % sH)
        e('s_lshl_b32 s%d, s%d, 2' % (sH, sH))
        e('s_bfe_u32 s%d, s2, 0x20003' % sS)
        e('s_add_u32 s%d, s%d, s%d' % (sH, sH, sS))
        e('s_lshr_b32 s%d, s2, 5' % sS)
    else:
        e('s_lshr_b32 s%d, s2, 3' % sH)
        e('s_and_b32 s%d, s2, 7' % sS)
    e('s_mul_i32 s%d, s2, 205' % sR)
    e('s_lshr_b32 s%d, s%d, 11' % (sR, sR))
    e('s_mul_i32 s%d, s%d, 10' % (sCB, sR))
    e('s_sub_u32 s%d, s2, s%d' % (sCB, sCB))
    for i in range(1, 8):
        e('s_mov_b32 s%d, %d' % (4 + i, 3072 * i))
    e('s_mul_i32 s%d, s%d, 6291456' % (sA, sH))
    e('s_mul_i32 s%d, s%d, 196608' % (sB, sS))
    e('s_add_u32 s%d, s%d, s%d' % (sA, sA, sB))
    e('s_add_u32 s%d, s%d, %d' % (sA, sA, 12288 * 384))
    e('s_mul_i32 s%d, s%d, %d' % (sB, sS, 80 * 12288))
    e('s_mul_i32 s%d, s%d, 384' % (sC, sH))
    e('s_add_u32 s%d, s%d, s%d' % (sB, sB, sC))
    for n in (SX, SK, SV, SWQ, SWO, SWS, SW1, SB1, SW2, SOUT, SB2):
        e('s_mov_b32 s%d, 0x00020000' % (n + 3))
    for n, sz in ((SX, 1280), (SK, 196608), (SV, 196608), (SWQ, 79 * 12288 + 384), (SWO, 255 * 1280 + 128),
                  (SWS, WS_SIZE), (SW1, 3072), (SB1, 3072), (SW2, 3072), (SOUT, 1280), (SB2, 2)):
        e('s_mov_b32 s%d, %d' % (n + 2, sz))
    e('s_waitcnt lgkmcnt(0)')
    e('s_load_dword s%d, s[40:41], 0' % sE)
    e('s_mov_b64 s[%d:%d], s[16:17]' % (SX, SX + 1))
    e('s_add_u32 s%d, s22, s%d' % (SWQ, sB))
    e('s_addc_u32 s%d, s23, 0' % (SWQ + 1))
    e('s_add_u32 s%d, s18, s%d' % (SK, sA))
    e('s_addc_u32 s%d, s19, 0' % (SK + 1))
    e('s_add_u32 s%d, s20, s%d' % (SV, sA))
    e('s_addc_u32 s%d, s21, 0' % (SV + 1))
    e('s_min_u32 s%d, s%d, 23' % (sA, sR))
    e('s_mul_i32 s%d, s%d, %d' % (sA, sA, 256 * 1280))
    e('s_lshl_b32 s%d, s%d, 7' % (sB, sCB))
    e('s_add_u32 s%d, s%d, s%d' % (sA, sA, sB))
    e('s_add_u32 s%d, s24, s%d' % (SWO, sA))
    e('s_addc_u32 s%d, s25, 0' % (SWO + 1))
    e('s_mov_b64 s[%d:%d], s[40:41]' % (SWS, SWS + 1))
    e('s_mov_b64 s[%d:%d], s[28:29]' % (SW1, SW1 + 1))
    e('s_mov_b64 s[%d:%d], s[30:31]' % (SB1, SB1 + 1))
    e('s_mov_b64 s[%d:%d], s[32:33]' % (SW2, SW2 + 1))
    e('s_mov_b64 s[%d:%d], s[36:37]' % (SOUT, SOUT + 1))
    e('s_mov_b64 s[%d:%d], s[34:35]' % (SB2, SB2 + 1))
    e('s_cmp_eq_u32 s%d, 8' % sW)
    e('s_cbranch_scc1 L_comm')

    stamps = []
    stamp('start')
    XA = ACC
    e('v_lshlrev_b32 v4, 4, v1')
    e('v_lshlrev_b32 v5, 2, v1')
    e('buffer_load_dwordx4 %s, v4, %s, 0 offen' % (vr(XA, 4), srd(SX)), 'x')
    e('buffer_load_dword v%d, v5, %s, 0 offen offset:1024' % (XA + 4, srd(SX)), 'x')
    e('v_mul_u32_u24 v3, 2731, v0')
    e('v_lshrrev_b32 v3, 16, v3')
    e('v_mul_u32_u24 v4, 24, v3')
    e('v_sub_u32 v4, v0, v4')
    e('s_mul_i32 s%d, s%d, 160' % (sA, sS))
    e('v_lshlrev_b32 v6, 1, v3')
    for k in range(4):
        e('buffer_load_ushort v%d, v6, %s, s%d offen offset:%d' % (XA + 5 + k, srd(SX), sA, 40 * k), 'x')
    e('v_mul_u32_u24 v7, 12288, v3')
    e('v_lshl_add_u32 v7, v4, 4, v7')
    e('v_mov_b32 v5, 0x80000000')
    e('v_cmp_gt_u32 vcc, 480, v0')
    e('s_mov_b32 s%d, %d' % (sA, 245760))
    e('s_mov_b32 s%d, %d' % (sB, 2 * 245760))
    e('s_mov_b32 s%d, %d' % (sC, 3 * 245760))
    e('v_cndmask_b32 v7, v5, v7, vcc')
    for k, so in enumerate(('0', 's%d' % sA, 's%d' % sB, 's%d' % sC)):
        e('buffer_load_dwordx4 %s, v7, %s, %s offen%s' % (vr(WB + 4 * k, 4), srd(SWQ), so, NTW), 'wq%d' % k)
    e('v_lshrrev_b32 v2, 3, v1')
    e('v_mul_u32_u24 v2, 384, v2')
    e('v_and_b32 v3, 7, v1')
    e('v_lshl_add_u32 v2, v3, 4, v2')
    e('s_mul_i32 s%d, s%d, %d' % (sA, sW, 64 * 384))
    e('v_add_u32 v2, s%d, v2' % sA)

    def kvload(S, i, tag):
        so = 's%d' % (4 + i) if i else '0'
        for c in range(3):
            e('buffer_load_dwordx4 %s, v2, %s, %s offen offset:%d%s' % (vr(KV + 12 * i + 4 * c, 4), srd(S), so, 128 * c, NT),
              '%s%d' % (tag, i))

    for i in range(NPRE):
        kvload(SK, i, 'k')
    a.vwait('x')
    S1, S2 = ACC + 10, ACC + 11
    e('v_mov_b32 v3, 0x3f803f80')
    for k in range(5):
        e('v_dot2_f32_bf16 v%d, v%d, v3, %s' % (S1, XA + k, 'v%d' % S1 if k else '0'))
        e('v_dot2_f32_bf16 v%d, v%d, v%d, %s' % (S2, XA + k, XA + k, 'v%d' % S2 if k else '0'))
    for k in range(4):
        e('v_lshlrev_b32 v%d, 16, v%d' % (XA + 5 + k, XA + 5 + k))
    allred([S1, S2], 'v_add_f32', [1, 2, 4, 8, 16, 32], TMP)
    ln_stats(S1, S2, TMP)
    XL = SC
    for k in range(4):
        e('v_sub_f32 v%d, v%d, v%d' % (XA + 5 + k, XA + 5 + k, S1))
    for k in range(4):
        e('v_cvt_pk_bf16_f32 v%d, 0, v%d' % (XA + 5 + k, XA + 5 + k))
    for k in range(4):
        e('v_mul_f32 v%d, v%d, v%d' % (XA + 5 + k, XA + 5 + k, S2))
    for k in range(4):
        e('v_cvt_pk_bf16_f32 v%d, v%d, 0' % (XL + k, XA + 5 + k))
        e('v_cvt_pk_bf16_f32 v%d, 0, v%d' % (XL + 4 + k, XA + 5 + k))
    QA = ACC + 12
    for k in range(4):
        a.vwait('wq%d' % k)
        for j in range(4):
            e('v_dot2_f32_bf16 v%d, v%d, v%d, %s' % (QA + 2 * j, WB + 4 * k + j, XL + k, 'v%d' % (QA + 2 * j) if k else '0'))
            e('v_dot2_f32_bf16 v%d, v%d, v%d, %s' % (QA + 2 * j + 1, WB + 4 * k + j, XL + 4 + k, 'v%d' % (QA + 2 * j + 1) if k else '0'))
    e('v_lshlrev_b32 v3, 5, v0')
    e('ds_write_b128 v3, %s offset:%d' % (vr(QA, 4), L_QP))
    e('ds_write_b128 v3, %s offset:%d' % (vr(QA + 4, 4), L_QP + 16))
    e('s_waitcnt lgkmcnt(0)')
    e('s_barrier')
    stamp('B1')
    for i in range(NPRE, 8):
        kvload(SK, i, 'k')
    tags()
    e('v_and_b32 v3, 7, v1')
    e('v_lshlrev_b32 v3, 4, v3')
    stamp('Kissued')
    e('s_barrier')
    stamp('B2')
    for c in range(3):
        e('ds_read_b128 %s, v3 offset:%d' % (vr(QR + 4 * c, 4), L_QB + 128 * c))
    e('s_waitcnt lgkmcnt(0)')
    NVK = P.get('nvk', 8)
    for i in range(8):
        a.vwait('k%d' % i)
        for j in range(4):
            for c in range(3):
                d = SC + i if c == 0 else TMP + c
                e('v_dot2_f32_bf16 v%d, v%d, v%d, %s' % (d, KV + 12 * i + 4 * c + j, QR + 4 * c + j, 'v%d' % d if j else '0'))
        if i < NVK:
            kvload(SV, i, 'v')
        e('v_add_f32 v%d, v%d, v%d' % (SC + i, SC + i, TMP + 1))
        e('v_add_f32 v%d, v%d, v%d' % (SC + i, SC + i, TMP + 2))
    stamp('Kdone')
    allred(list(range(SC, SC + 8)), 'v_add_f32', [1, 2, 4], TMP)
    for i in range(8):
        e('v_cvt_pk_bf16_f32 v%d, 0, v%d' % (SC + i, SC + i))
    for i in range(8):
        e('v_mul_f32 v%d, %s, v%d' % (SC + i, f2u(192 ** -0.5), SC + i))
    for i in range(8):
        e('v_cvt_pk_bf16_f32 v%d, 0, v%d' % (SC + i, SC + i))
    e('v_max3_f32 v4, v%d, v%d, v%d' % (SC, SC + 1, SC + 2))
    e('v_max3_f32 v5, v%d, v%d, v%d' % (SC + 3, SC + 4, SC + 5))
    e('v_max3_f32 v4, v4, v%d, v%d' % (SC + 6, SC + 7))
    e('v_max_f32 v4, v4, v5')
    allred([4], 'v_max_f32', [8, 16, 32], TMP)
    for i in range(8):
        e('v_sub_f32 v%d, v%d, v4' % (SC + i, SC + i))
    for i in range(8):
        e('v_mul_f32 v%d, %s, v%d' % (SC + i, f2u(LOG2E), SC + i))
    for i in range(8):
        e('v_exp_f32 v%d, v%d' % (SC + i, SC + i))
    e('v_add_f32 v5, v%d, v%d' % (SC, SC + 1))
    for i in range(2, 8):
        e('v_add_f32 v5, v5, v%d' % (SC + i))
    allred([5], 'v_add_f32', [8, 16, 32], TMP)
    e('s_lshl_b32 s%d, s%d, 3' % (sA, sW))
    e('v_mov_b32 v3, s%d' % sA)
    e('ds_write_b64 v3, v[4:5] offset:%d' % L_ML)

    def woload():
        e('v_lshrrev_b32 v6, 3, v1')
        e('v_mul_u32_u24 v6, 5120, v6')
        e('v_and_b32 v7, 7, v1')
        e('v_lshl_add_u32 v6, v7, 4, v6')
        e('s_mul_i32 s%d, s%d, %d' % (sA, sW, 32 * 1280))
        e('s_cmp_ge_u32 s2, 240')
        e('s_cselect_b32 s%d, 0x40000000, s%d' % (sA, sA))
        e('v_add_u32 v6, s%d, v6' % sA)
        for k in range(4):
            e('buffer_load_dwordx4 %s, v6, %s, 0 offen offset:%d%s' % (vr(WB + 4 * k, 4), srd(SWO), 1280 * k, NTW), 'wo')
        e('v_lshlrev_b32 v7, 1, v0')
        for n, S in enumerate((SW1, SB1, SW2)):
            for k in range(3):
                e('buffer_load_ushort v%d, v7, %s, 0 offen offset:%d' % (QR + 3 * n + k, srd(S), 1024 * k), 'mw')

    WOAT = P.get('woat', 0)
    nissued = NVK
    for i in range(8):
        if nissued < 8:
            kvload(SV, nissued, 'v')
            nissued += 1
        if i == max(WOAT, 7 - NVK):
            woload()
        e('v_cvt_pk_bf16_f32 v%d, v%d, 0' % (TMP, SC + i))
        e('v_cvt_pk_bf16_f32 v%d, 0, v%d' % (TMP + 1, SC + i))
        a.vwait('v%d' % i)
        for n in range(12):
            for hh in range(2):
                d = ACC + 2 * n + hh
                e('v_dot2_f32_bf16 v%d, v%d, v%d, %s' % (d, KV + 12 * i + n, TMP + hh, 'v%d' % d if i else '0'))
    stamp('Vdone')
    for i in range(12):
        e('v_permlane32_swap_b32 v%d, v%d' % (ACC + i, ACC + 12 + i))
    for i in range(12):
        e('v_add_f32 v%d, v%d, v%d' % (ACC + i, ACC + i, ACC + 12 + i))
    for i in range(6):
        e('v_permlane16_swap_b32 v%d, v%d' % (ACC + i, ACC + 6 + i))
    for i in range(6):
        e('v_add_f32 v%d, v%d, v%d' % (ACC + i, ACC + i, ACC + 6 + i))
    e('v_and_b32 v3, 7, v1')
    e('v_mul_u32_u24 v3, 96, v3')
    e('v_lshrrev_b32 v4, 4, v1')
    e('v_mad_u32_u24 v3, v4, 24, v3')
    e('s_mul_i32 s%d, s%d, 768' % (sA, sW))
    e('v_add_u32 v3, s%d, v3' % sA)
    allred(list(range(ACC, ACC + 6)), 'v_add_f32', [8], TMP)
    for i in range(3):
        e('ds_write_b64 v3, %s offset:%d' % (vr(ACC + 2 * i, 2), L_OP + 8 * i))
    e('s_waitcnt lgkmcnt(0)')
    e('s_barrier')
    stamp('B3')
    e('s_cmp_ge_u32 s2, 240')
    e('s_cbranch_scc1 L_stream_end')
    e('s_lshl_b32 s%d, s%d, 3' % (sA, sR))
    e('s_add_u32 s%d, s%d, s%d' % (sA, sA, sW))
    e('s_mul_i32 s%d, s%d, 171' % (sB, sA))
    e('s_lshr_b32 s%d, s%d, 10' % (sB, sB))
    e('s_mul_i32 s%d, s%d, 6' % (sC, sB))
    e('s_sub_u32 s%d, s%d, s%d' % (sA, sA, sC))
    e('s_lshl_b32 s%d, s%d, 7' % (sA, sA))
    e('s_lshl_b32 s%d, s%d, 13' % (sB, sB))
    e('s_add_u32 s%d, s%d, %d' % (sB, sB, OX))
    e('s_add_u32 s%d, s%d, s%d' % (sA, sA, sB))
    e('v_and_b32 v3, 7, v1')
    e('v_lshlrev_b32 v3, 10, v3')
    e('v_lshrrev_b32 v4, 3, v1')
    e('v_lshl_add_u32 v4, v4, 4, v3')
    G0, G1, GT = KV, KV + 4, KV + 8
    poll('h1ml', ['buffer_load_dwordx4 %s, v3, %s, s%d offen offset:768 sc1' % (vr(G1, 4), srd(SWS), sB)], [G1], GT)
    e('v_and_b32 v%d, 0xffff0000, v%d' % (G1, G1))
    e('v_mov_b32 v5, v%d' % G1)
    allred([5], 'v_max_f32', [1, 2, 4], TMP)
    e('v_sub_f32 v5, v%d, v5' % G1)
    e('v_mul_f32 v5, %s, v5' % f2u(LOG2E))
    e('v_exp_f32 v5, v5')
    e('v_mul_f32 v6, v5, v%d' % (G1 + 1))
    allred([6], 'v_add_f32', [1, 2, 4], TMP)
    e('v_rcp_f32 v6, v6')
    e('v_mul_f32 v5, v5, v6')
    for n in range(9):
        e('v_lshlrev_b32 v%d, 16, v%d' % (QR + n, QR + n))
    poll('h1o', ['buffer_load_dwordx4 %s, v4, %s, s%d offen sc1' % (vr(G0, 4), srd(SWS), sA)], [G0], GT)
    stamp('h1')
    for k in range(4):
        e('v_mul_f32 v%d, v5, v%d' % (G0 + k, G0 + k))
    allred(list(range(G0, G0 + 4)), 'v_add_f32', [1, 2, 4], TMP)
    for k in range(4):
        e('v_cvt_pk_bf16_f32 v%d, v%d, 0' % (SC + k, G0 + k))
        e('v_cvt_pk_bf16_f32 v%d, 0, v%d' % (SC + 4 + k, G0 + k))
    for k in range(4):
        for j in range(4):
            e('v_dot2_f32_bf16 v%d, v%d, v%d, %s' % (ACC + 2 * j, WB + 4 * k + j, SC + k, 'v%d' % (ACC + 2 * j) if k else '0'))
            e('v_dot2_f32_bf16 v%d, v%d, v%d, %s' % (ACC + 2 * j + 1, WB + 4 * k + j, SC + 4 + k, 'v%d' % (ACC + 2 * j + 1) if k else '0'))
    e('v_and_b32 v3, 7, v1')
    e('v_lshlrev_b32 v3, 5, v3')
    e('v_lshrrev_b32 v4, 4, v1')
    e('v_lshl_add_u32 v3, v4, 3, v3')
    e('s_lshl_b32 s%d, s%d, 8' % (sA, sW))
    e('v_add_u32 v3, s%d, v3' % sA)
    for i in range(4):
        e('v_permlane32_swap_b32 v%d, v%d' % (ACC + i, ACC + 4 + i))
    for i in range(4):
        e('v_add_f32 v%d, v%d, v%d' % (ACC + i, ACC + i, ACC + 4 + i))
    for i in range(2):
        e('v_permlane16_swap_b32 v%d, v%d' % (ACC + i, ACC + 2 + i))
    for i in range(2):
        e('v_add_f32 v%d, v%d, v%d' % (ACC + i, ACC + i, ACC + 2 + i))
    allred([ACC, ACC + 1], 'v_add_f32', [8], TMP)
    e('ds_write_b64 v3, %s offset:%d' % (vr(ACC, 2), L_YP))
    e('s_waitcnt lgkmcnt(0)')
    e('s_barrier')
    stamp('B4')
    e('s_cmp_ge_u32 s2, 214')
    e('s_cbranch_scc1 L_stream_end')
    e('s_mul_i32 s%d, s2, 12' % sA)
    e('v_mov_b32 v3, s%d' % sA)
    K0 = -2.0 * 0.7978845608028654 * LOG2E
    e('v_mov_b32 v6, %s' % f2u(K0))
    e('s_mov_b32 s%d, %s' % (sB, f2u(K0 * 0.044715)))
    e('s_lshl_b32 s%d, s%d, 4' % (sA, sW))
    e('v_lshrrev_b32 v4, 4, v1')
    e('v_lshl_add_u32 v4, v4, 2, s%d' % sA)
    e('s_barrier')
    stamp('B5')
    for i in range(3):
        e('ds_read_b32 v%d, v3 offset:%d' % (SC + i, L_HN + 4 * i))
    e('s_waitcnt lgkmcnt(0)')
    U, Z = KV, KV + 12
    idx = [(i, k) for i in range(3) for k in range(3)]
    for n, (i, k) in enumerate(idx):
        e('v_fma_f32 v%d, v%d, v%d, v%d' % (U + n, SC + i, QR + k, QR + 3 + k))
    for n in range(9):
        e('v_mul_f32 v%d, v%d, v%d' % (Z + n, U + n, U + n))
    for n in range(9):
        e('v_fma_f32 v%d, v%d, s%d, v6' % (Z + n, Z + n, sB))
    for n in range(9):
        e('v_mul_f32 v%d, v%d, v%d' % (Z + n, Z + n, U + n))
    for n, (i, k) in enumerate(idx):
        e('v_exp_f32 v%d, v%d' % (Z + n, Z + n))
        e('v_mul_f32 v%d, v%d, v%d' % (U + n, U + n, QR + 6 + k))
    for n in range(9):
        e('v_add_f32 v%d, 1.0, v%d' % (Z + n, Z + n))
    for n in range(9):
        e('v_rcp_f32 v%d, v%d' % (Z + n, Z + n))
    e('v_mov_b32 v%d, 0' % (ACC + 3))
    for k in range(3):
        for i in range(3):
            n = 3 * i + k
            if k == 0:
                e('v_mul_f32 v%d, v%d, v%d' % (ACC + i, U + n, Z + n))
            else:
                e('v_fma_f32 v%d, v%d, v%d, v%d' % (ACC + i, U + n, Z + n, ACC + i))
    e('v_permlane32_swap_b32 v%d, v%d' % (ACC, ACC + 2))
    e('v_permlane32_swap_b32 v%d, v%d' % (ACC + 1, ACC + 3))
    e('v_add_f32 v%d, v%d, v%d' % (ACC, ACC, ACC + 2))
    e('v_add_f32 v%d, v%d, v%d' % (ACC + 1, ACC + 1, ACC + 3))
    e('v_permlane16_swap_b32 v%d, v%d' % (ACC, ACC + 1))
    e('v_add_f32 v%d, v%d, v%d' % (ACC, ACC, ACC + 1))
    allred([ACC], 'v_add_f32', [1, 2, 4, 8], TMP)
    e('ds_write_b32 v4, v%d offset:%d' % (ACC, L_RED))
    e('s_waitcnt lgkmcnt(0)')
    e('s_barrier')
    e('L_stream_end:')
    e('s_waitcnt vmcnt(0)')
    if STAMP:
        e('s_cmp_lg_u32 s%d, 0' % sW)
        e('s_cbranch_scc1 L_end')
        dump_stamps(1)
    e('s_endpgm')

    e('L_comm:')
    a.vm = []
    stamps.clear()
    stamp('start')
    if P.get('prio', 1):
        e('s_setprio 3')
    VM = 2
    e('v_mov_b32 v%d, 0xfffff800' % VM)
    e('v_and_b32 v3, 15, v1')
    e('v_lshlrev_b32 v3, 2, v3')
    e('v_mov_b32 v4, 0')
    e('ds_write_b32 v3, v4 offset:%d' % L_ML)
    XO, B2R = 160, 162
    e('s_sub_u32 s%d, s2, 236' % sA)
    e('s_lshl_b32 s%d, s%d, 6' % (sA, sA))
    e('s_cmp_ge_u32 s2, 236')
    e('s_cselect_b32 s%d, s%d, 0' % (sA, sA))
    e('v_and_b32 v3, 7, v1')
    e('v_lshlrev_b32 v3, 3, v3')
    e('buffer_load_dwordx2 %s, v3, %s, s%d offen' % (vr(XO, 2), srd(SX), sA))
    e('buffer_load_ushort v%d, v4, %s, 0 offen' % (B2R, srd(SB2)))
    tags()
    e('v_lshlrev_b32 v3, 4, v1')
    e('s_mov_b32 exec_hi, 0xffff')
    e('s_lshl_b32 s%d, s%d, 3' % (sA, sH))
    e('s_mul_i32 s%d, s%d, 768' % (sB, sA))
    e('s_add_u32 s%d, s%d, %d' % (sB, sB, QX))
    e('s_add_u32 s%d, s%d, s%d' % (sA, sA, sS))
    e('s_lshl_b32 s97, s%d, 10' % sA)
    e('s_add_u32 s97, s97, %d' % OX)
    e('s_mul_i32 s%d, s%d, 768' % (sA, sA))
    e('s_add_u32 s%d, s%d, %d' % (sA, sA, QX))
    e('s_barrier')
    stamp('B1')
    R = 8
    for g in range(20):
        e('ds_read_b128 %s, v3 offset:%d' % (vr(R + 4 * g, 4), L_QP + 768 * g))
    e('s_waitcnt lgkmcnt(0)')
    n = 20
    while n > 1:
        hlf = n // 2
        for g in range(hlf):
            for k in (0, 2):
                e('v_pk_add_f32 %s, %s, %s' % (vr(R + 4 * g + k, 2), vr(R + 4 * g + k, 2), vr(R + 4 * (n - 1 - g) + k, 2)))
        n -= hlf
    tagins(R, VM)
    e('buffer_store_dwordx4 %s, v3, %s, s%d offen sc1' % (vr(R, 4), srd(SWS), sA))
    stamp('qpub')
    e('v_add_u32 v5, 3072, v3')
    G = 16
    poll('q', ['buffer_load_dwordx4 %s, v%d, %s, s%d offen offset:%d sc1' % (vr(G + 4 * s, 4), 3 if s < 4 else 5, srd(SWS), sB, 768 * (s % 4))
               for s in range(8)], [G + 4 * s for s in range(8)], 8)
    stamp('qgot')
    n = 8
    while n > 1:
        hlf = n // 2
        for g in range(hlf):
            for k in (0, 2):
                e('v_pk_add_f32 %s, %s, %s' % (vr(G + 4 * g + k, 2), vr(G + 4 * g + k, 2), vr(G + 4 * (n - 1 - g) + k, 2)))
        n -= hlf
    e('v_cvt_pk_bf16_f32 v%d, v%d, v%d' % (G, G, G + 1))
    e('v_cvt_pk_bf16_f32 v%d, v%d, v%d' % (G + 1, G + 2, G + 3))
    e('v_lshlrev_b32 v5, 3, v1')
    e('ds_write_b64 v5, %s offset:%d' % (vr(G, 2), L_QB))
    e('s_waitcnt lgkmcnt(0)')
    e('s_barrier')
    e('s_mov_b64 exec, -1')
    e('v_and_b32 v5, 7, v1')
    e('v_lshlrev_b32 v5, 3, v5')
    e('s_mov_b32 s%d, %d' % (sCNT, SPIN * 4))
    e('L_ml_poll:')
    e('ds_read_b64 v[8:9], v5 offset:%d' % L_ML)
    e('s_waitcnt lgkmcnt(0)')
    e('v_cmp_eq_u32 vcc, 0, v9')
    e('s_cbranch_vccz L_ml_ok')
    e('s_sleep 4')
    e('s_sub_u32 s%d, s%d, 1' % (sCNT, sCNT))
    e('s_cmp_lg_u32 s%d, 0' % sCNT)
    e('s_cbranch_scc1 L_ml_poll')
    e('L_ml_ok:')
    stamp('ml')
    e('v_mov_b32 v12, v8')
    allred([12], 'v_max_f32', [1, 2, 4], TMP)
    e('v_sub_f32 v10, v8, v12')
    e('v_mul_f32 v10, %s, v10' % f2u(LOG2E))
    e('v_exp_f32 v10, v10')
    e('v_mul_f32 v13, v10, v9')
    allred([13], 'v_add_f32', [1, 2, 4], TMP)
    e('v_mov_b32 v14, 0')
    e('v_mov_b32 v15, 0')
    tagins(12, VM)
    e('s_mov_b64 exec, 1')
    e('buffer_store_dwordx4 v[12:15], v3, %s, s97 offen offset:768 sc1' % srd(SWS))
    e('s_mov_b64 exec, -1')
    FW = 4
    for w in range(8):
        e('v_readlane_b32 s%d, v10, %d' % (FW + w, w))
    e('v_mul_u32_u24 v5, 43, v1')
    e('v_lshrrev_b32 v5, 8, v5')
    e('v_mul_u32_u24 v6, 6, v5')
    e('v_sub_u32 v6, v1, v6')
    e('v_lshlrev_b32 v5, 5, v5')
    e('v_and_b32 v7, 1, v6')
    e('v_lshl_add_u32 v5, v7, 4, v5')
    e('v_lshrrev_b32 v6, 1, v6')
    e('v_lshl_add_u32 v5, v6, 8, v5')
    e('s_mov_b32 exec_hi, 0xffff')
    e('s_barrier')
    stamp('B3')
    for w in range(8):
        e('ds_read_b128 %s, v3 offset:%d' % (vr(G + 4 * w, 4), L_OP + 768 * w))
    e('s_waitcnt lgkmcnt(0)')
    for w in range(8):
        base = 8 if w < 4 else 12
        for k in range(4):
            if w % 4 == 0:
                e('v_mul_f32 v%d, s%d, v%d' % (base + k, FW + w, G + 4 * w + k))
            else:
                e('v_fmac_f32 v%d, s%d, v%d' % (base + k, FW + w, G + 4 * w + k))
    for k in range(4):
        e('v_add_f32 v%d, v%d, v%d' % (8 + k, 8 + k, 12 + k))
    tagins(8, VM)
    e('buffer_store_dwordx4 v[8:11], v5, %s, s97 offen sc1' % srd(SWS))
    stamp('opub')
    e('s_cmp_ge_u32 s2, 240')
    e('s_cbranch_scc1 L_owner')
    e('s_mov_b64 exec, 0xffff')
    e('s_mul_i32 s%d, s%d, 24' % (sA, sCB))
    e('s_add_u32 s%d, s%d, s%d' % (sA, sA, sR))
    e('s_lshl_b32 s%d, s%d, 8' % (sA, sA))
    e('s_add_u32 s%d, s%d, %d' % (sA, sA, YX))
    e('s_barrier')
    for w in range(8):
        e('ds_read_b128 %s, v3 offset:%d' % (vr(G + 4 * w, 4), L_YP + 256 * w))
    e('s_waitcnt lgkmcnt(0)')
    n = 8
    while n > 1:
        hlf = n // 2
        for g in range(hlf):
            for k in (0, 2):
                e('v_pk_add_f32 %s, %s, %s' % (vr(G + 4 * g + k, 2), vr(G + 4 * g + k, 2), vr(G + 4 * (n - 1 - g) + k, 2)))
        n -= hlf
    tagins(G, VM)
    e('buffer_store_dwordx4 %s, v3, %s, s%d offen sc1' % (vr(G, 4), srd(SWS), sA))
    stamp('ypub')
    e('s_cmp_lt_u32 s2, 214')
    e('s_cbranch_scc1 L_final')
    e('s_cmp_lt_u32 s2, 236')
    e('s_cbranch_scc1 L_comm_end')
    e('L_owner:')
    e('s_mov_b64 exec, -1')
    e('s_sub_u32 s%d, s2, 236' % sA)
    e('s_lshr_b32 s%d, s%d, 1' % (sB, sA))
    e('s_mul_i32 s%d, s%d, %d' % (sB, sB, 24 * 256))
    e('s_and_b32 s%d, s%d, 1' % (sC, sA))
    e('s_lshl_b32 s%d, s%d, 7' % (sC, sC))
    e('s_add_u32 s%d, s%d, s%d' % (sB, sB, sC))
    e('s_add_u32 s%d, s%d, %d' % (sB, sB, YX))
    e('s_lshl_b32 s%d, s%d, 7' % (sA, sA))
    e('s_add_u32 s%d, s%d, %d' % (sA, sA, HX))
    e('v_lshrrev_b32 v5, 3, v1')
    e('v_lshlrev_b32 v5, 8, v5')
    e('v_and_b32 v6, 7, v1')
    e('v_lshl_add_u32 v5, v6, 4, v5')
    e('v_add_u32 v6, 4096, v5')
    G = 24
    poll('y', ['buffer_load_dwordx4 %s, v5, %s, s%d offen sc1' % (vr(G, 4), srd(SWS), sB),
               'buffer_load_dwordx4 %s, v5, %s, s%d offen offset:2048 sc1' % (vr(G + 4, 4), srd(SWS), sB),
               'buffer_load_dwordx4 %s, v6, %s, s%d offen sc1' % (vr(G + 8, 4), srd(SWS), sB)], [G, G + 4, G + 8], 8)
    st_owner = len(stamps)
    stamp('ygot')
    for k in range(4):
        e('v_add_f32 v%d, v%d, v%d' % (G + k, G + k, G + 4 + k))
    for k in range(4):
        e('v_add_f32 v%d, v%d, v%d' % (G + k, G + k, G + 8 + k))
    allred(list(range(G, G + 4)), 'v_add_f32', [8, 16, 32], 8)
    e('v_lshlrev_b32 v8, 16, v%d' % XO)
    e('v_and_b32 v9, 0xffff0000, v%d' % XO)
    e('v_lshlrev_b32 v10, 16, v%d' % (XO + 1))
    e('v_and_b32 v11, 0xffff0000, v%d' % (XO + 1))
    for k in range(4):
        e('v_cvt_pk_bf16_f32 v%d, 0, v%d' % (G + k, G + k))
    for k in range(4):
        e('v_add_f32 v%d, v%d, v%d' % (G + k, G + k, 8 + k))
    for k in range(4):
        e('v_cvt_pk_bf16_f32 v%d, 0, v%d' % (G + k, G + k))
    for k in range(4):
        e('v_or_b32 v%d, s%d, v%d' % (G + k, T0 + k, G + k))
    e('s_mov_b64 exec, 0xff')
    e('buffer_store_dwordx4 %s, v3, %s, s%d offen sc1' % (vr(G, 4), srd(SWS), sA))
    stamp('hpub')
    e('s_branch L_comm_end')
    e('L_final:')
    del stamps[st_owner:]
    e('s_mov_b64 exec, -1')
    e('v_and_b32 v5, 31, v1')
    e('v_lshlrev_b32 v5, 4, v5')
    e('s_mov_b32 s%d, %d' % (sA, HX))
    G = 24
    poll('h', ['buffer_load_dwordx4 %s, v3, %s, s%d offen sc1' % (vr(G, 4), srd(SWS), sA),
               'buffer_load_dwordx4 %s, v3, %s, s%d offen offset:1024 sc1' % (vr(G + 4, 4), srd(SWS), sA),
               'buffer_load_dwordx4 %s, v5, %s, s%d offen offset:2048 sc1' % (vr(G + 8, 4), srd(SWS), sA)], [G, G + 4, G + 8], 8)
    stamp('hgot')
    for k in range(12):
        e('v_and_b32 v%d, 0xffff0000, v%d' % (G + k, G + k))
    for k in range(3):
        e('ds_write_b128 v%d, %s offset:%d' % (3 if k < 2 else 5, vr(G + 4 * k, 4), L_H + 1024 * k))
    src = G
    for rnd in range(2):
        e('v_add_f32 v8, v%d, v%d' % (src + 8, src + 9))
        e('v_mul_f32 v9, v%d, v%d' % (src + 8, src + 8))
        e('v_add_f32 v10, v%d, v%d' % (src, src + 1))
        e('v_mul_f32 v11, v%d, v%d' % (src, src))
        e('v_add_f32 v8, v8, v%d' % (src + 10))
        e('v_fmac_f32 v9, v%d, v%d' % (src + 9, src + 9))
        e('v_add_f32 v8, v8, v%d' % (src + 11))
        e('v_fmac_f32 v9, v%d, v%d' % (src + 10, src + 10))
        e('v_fmac_f32 v11, v%d, v%d' % (src + 1, src + 1))
        e('v_fmac_f32 v9, v%d, v%d' % (src + 11, src + 11))
        for k in range(2, 8):
            e('v_add_f32 v10, v10, v%d' % (src + k))
            e('v_fmac_f32 v11, v%d, v%d' % (src + k, src + k))
        e('v_fma_f32 v8, v8, 0.5, v10')
        e('v_fma_f32 v9, v9, 0.5, v11')
        allred([8, 9], 'v_add_f32', [1, 2, 4, 8, 16, 32], 10)
        ln_stats(8, 9, 10)
        dst = 40
        for k in range(12):
            e('v_sub_f32 v%d, v%d, v8' % (dst + k, src + k))
        for k in range(12):
            e('v_cvt_pk_bf16_f32 v%d, 0, v%d' % (dst + k, dst + k))
        for k in range(12):
            e('v_mul_f32 v%d, v%d, v9' % (dst + k, dst + k))
        for k in range(12):
            e('v_cvt_pk_bf16_f32 v%d, 0, v%d' % (dst + k, dst + k))
        src = dst
    for k in range(3):
        e('ds_write_b128 v%d, %s offset:%d' % (3 if k < 2 else 5, vr(src + 4 * k, 4), L_HN + 1024 * k))
    e('s_waitcnt lgkmcnt(0)')
    e('s_barrier')
    stamp('B5')
    e('s_cmp_lg_u32 s2, 0')
    e('s_cbranch_scc1 L_noep')
    e('s_add_u32 s%d, s%d, 1' % (sA, sE))
    e('v_mov_b32 v8, s%d' % sA)
    e('s_mov_b64 exec, 1')
    e('buffer_store_dword v8, v3, %s, 0 offen' % srd(SWS))
    e('L_noep:')
    e('s_mov_b64 exec, 7')
    e('s_mul_i32 s%d, s2, 3' % sA)
    e('v_add_u32 v6, s%d, v1' % sA)
    e('v_lshlrev_b32 v7, 2, v6')
    e('ds_read_b32 v20, v7 offset:%d' % L_H)
    e('v_lshlrev_b32 v6, 1, v6')
    e('v_lshlrev_b32 v5, 2, v1')
    e('v_lshlrev_b32 v%d, 16, v%d' % (B2R, B2R))
    e('s_barrier')
    for w in range(0, 8, 2):
        e('ds_read_b32 v%d, v5 offset:%d' % (8 + w, L_RED + 16 * w))
        e('ds_read_b32 v%d, v5 offset:%d' % (9 + w, L_RED + 16 * w + 16))
    e('s_waitcnt lgkmcnt(0)')
    for k in range(4):
        e('v_add_f32 v%d, v%d, v%d' % (8 + k, 8 + k, 12 + k))
    e('v_add_f32 v8, v8, v10')
    e('v_add_f32 v9, v9, v11')
    e('v_add_f32 v8, v8, v9')
    e('v_cvt_pk_bf16_f32 v8, 0, v8')
    e('v_add_f32 v8, v8, v%d' % B2R)
    e('v_cvt_pk_bf16_f32 v8, 0, v8')
    e('v_add_f32 v8, v8, v20')
    e('v_cvt_pk_bf16_f32 v8, v8, 0')
    e('buffer_store_short v8, v6, %s, 0 offen' % srd(SOUT))
    stamp('out')
    e('L_comm_end:')
    dump_stamps(0)
    e('L_end:')
    e('s_endpgm')

    ref = open('cdna_kernels/%s.s.ref' % NAME).read().split('\n')
    head = [l for l in ref if l.startswith(';') and '@launch grid' not in l]
    out = '\n'.join(head) + '\n'
    out += '; @launch grid=(256,1,1) block=(576,1,1) lds=%d\n' % LDS_SIZE
    out += '.amdgcn_target "amdgcn-amd-amdhsa--gfx950"\n.text\n.globl %s_kernel\n.p2align 8\n.type %s_kernel,@function\n%s_kernel:\n' % (NAME, NAME, NAME)
    out += a.text()
    out += '''.section .rodata,"a"
.p2align 6
.amdhsa_kernel %s_kernel
  .amdhsa_next_free_vgpr %d
  .amdhsa_next_free_sgpr 102
  .amdhsa_accum_offset %d
  .amdhsa_group_segment_fixed_size 0
  .amdhsa_kernarg_size 104
  .amdhsa_user_sgpr_count 2
  .amdhsa_user_sgpr_kernarg_segment_ptr 1
  .amdhsa_system_sgpr_workgroup_id_x 1
.end_amdhsa_kernel
''' % (NAME, NV, NV)
    return out


if __name__ == '__main__':
    P = {}
    outp = 'cdna_kernels/%s.s' % NAME
    for arg in sys.argv[1:]:
        k, v = arg.split('=')
        if k == 'out':
            outp = v
        else:
            P[k] = int(v, 0)
    for x in range(192):
        assert (x * 171) >> 10 == x // 6
    for x in range(256):
        assert (x * 205) >> 11 == x // 10
    for x in range(512):
        assert (x * 2731) >> 16 == x // 24
    for x in range(48):
        assert (x * 43) >> 8 == x // 6
    open(outp, 'w').write(gen(P))
```

```python
import sys, struct, os
sys.path.insert(0, os.path.dirname(os.path.abspath(__file__)))
from asmlib import Asm

NAME = 'sequential_preLN__sliding_block_cached__mixer_token_mlp__decode'


def f2u(x):
    return '0x%08x' % struct.unpack('<I', struct.pack('<f', x))[0]


LOG2E = 1.4426950408889634
QX, OX, YX, HX, TS = 0x1000, 0x50000, 0xA0000, 0xB0000, 0xC0000
WS_SIZE = 0x100000
L_QP = 0
L_QB = 16896
L_ML = 17408
L_OP = 17920
L_YP = 24064
L_HN = 26112
L_H = 28928
L_RED = 31744
LDS_SIZE = 32768
sW, sH, sS = 3, 12, 13
SX, SK, SV, SWQ, SWO, SWS, SW1, SB1, SW2, SOUT, SB2 = 44, 48, 52, 56, 60, 64, 68, 72, 76, 80, 84
T0, sE = 88, 92
sCNT, sA, sB, sC = 93, 94, 95, 96
sR, sCB = 14, 15
KV, WB, QR, ACC, SC = 8, 104, 120, 132, 156
TMP = 164
NV = 168
DP = 'row_mask:0xf bank_mask:0xf'


def srd(n):
    return 's[%d:%d]' % (n, n + 3)


def vr(a, n):
    return 'v[%d:%d]' % (a, a + n - 1) if n > 1 else 'v%d' % a


def gen(P):
    a = Asm()
    e = a.e
    NT = ' nt' if P.get('nt', 1) else ''
    NTW = ' nt' if P.get('ntw', 1) else ''
    NPRE = P.get('npre', 2)
    SPIN = P.get('spin', 1 << 20)
    STAMP = P.get('stamp', 0)
    SLP = P.get('sleep', 1)
    stamps = []
    stampnames = {}

    def stamp(name):
        if STAMP:
            r = 16 + 2 * len(stamps)
            assert r <= 40
            e('s_memrealtime s[%d:%d]' % (r, r + 1))
            stamps.append(name)

    def dump_stamps(slot):
        if not STAMP:
            return
        e('s_waitcnt lgkmcnt(0)')
        e('s_mov_b64 exec, -1')
        e('v_mov_b32 v4, 0')
        for i in range(len(stamps)):
            e('v_writelane_b32 v4, s%d, %d' % (16 + 2 * i, i))
        if STAMP == 2:
            stampnames[slot] = list(stamps)
            if slot == 1:
                return
            e('s_cmp_ge_u32 s2, 214')
            e('s_cbranch_scc1 L_end')
            e('s_not_b32 s16, s16')
            e('v_writelane_b32 v4, s16, 15')
            e('s_load_dwordx2 s[%d:%d], s[0:1], 88' % (SX, SX + 1))
            e('s_mov_b32 s%d, 64' % (SX + 2))
            e('v_lshlrev_b32 v5, 2, v1')
            e('s_mov_b64 exec, 0xffff')
            e('s_waitcnt lgkmcnt(0)')
            e('buffer_atomic_umax v4, v5, %s, 0 offen sc1' % srd(SX))
            return
        e('s_lshl_b32 s%d, s2, 7' % sA)
        e('s_add_u32 s%d, s%d, %d' % (sA, sA, TS + slot * 64))
        e('v_lshlrev_b32 v5, 2, v1')
        e('s_mov_b64 exec, 0xffff')
        e('buffer_store_dword v4, v5, %s, s%d offen' % (srd(SWS), sA))
        stampnames[slot] = list(stamps)

    def allred(regs, op, steps, tmp):
        for st in steps:
            if st in (1, 2, 4, 8):
                ctl = {1: 'quad_perm:[1,0,3,2]', 2: 'quad_perm:[2,3,0,1]', 4: 'row_half_mirror', 8: 'row_ror:8'}[st]
                for r in regs:
                    e('%s_dpp v%d, v%d, v%d %s %s' % (op, r, r, r, ctl, DP))
            else:
                for i, r in enumerate(regs):
                    e('v_mov_b32 v%d, v%d' % (tmp + i, r))
                for i, r in enumerate(regs):
                    e('v_permlane%d_swap_b32 v%d, v%d' % (st, r, tmp + i))
                for i, r in enumerate(regs):
                    e('%s v%d, v%d, v%d' % (op, r, r, tmp + i))

    def tagins(r, vmask):
        for k in range(4):
            e('v_and_or_b32 v%d, v%d, v%d, s%d' % (r + k, r + k, vmask, T0 + k))

    def tagchk(rs, t):
        for n, r in enumerate(rs):
            for k in range(4):
                e('v_xor_b32 v%d, s%d, v%d' % (t + 1 + k if n else t + k, T0 + k, r + k))
            if n == 0:
                e('v_or3_b32 v%d, v%d, v%d, v%d' % (t, t, t + 1, t + 2))
                e('v_or_b32 v%d, v%d, v%d' % (t, t, t + 3))
            else:
                e('v_or3_b32 v%d, v%d, v%d, v%d' % (t, t, t + 1, t + 2))
                e('v_or3_b32 v%d, v%d, v%d, v%d' % (t, t, t + 3, t + 4))
        e('v_and_b32 v%d, 0x7ff, v%d' % (t, t))
        e('v_cmp_ne_u32 vcc, 0, v%d' % t)

    def poll(name, loads, rs, t, sleep=SLP):
        e('s_mov_b32 s%d, %d' % (sCNT, SPIN))
        e('%s_poll:' % name)
        for l in loads:
            e(l)
        a.vwait0()
        tagchk(rs, t)
        e('s_cbranch_vccz %s_ok' % name)
        if sleep:
            e('s_sleep %d' % sleep)
        e('s_sub_u32 s%d, s%d, 1' % (sCNT, sCNT))
        e('s_cmp_lg_u32 s%d, 0' % sCNT)
        e('s_cbranch_scc1 %s_poll' % name)
        e('%s_ok:' % name)

    def tags():
        e('s_waitcnt lgkmcnt(0)')
        e('s_and_b32 s%d, s%d, 0x7ff' % (T0, sE))
        e('s_xor_b32 s%d, s%d, 0x2a5' % (T0 + 1, T0))
        e('s_lshr_b32 s%d, s%d, 11' % (T0 + 2, sE))
        e('s_and_b32 s%d, s%d, 0x7ff' % (T0 + 2, T0 + 2))
        e('s_lshr_b32 s%d, s%d, 22' % (T0 + 3, sE))
        e('s_xor_b32 s%d, s%d, 0x4d3' % (T0 + 3, T0 + 3))

    def ln_stats(s1, s2, t):
        e('v_mul_f32 v%d, %s, v%d' % (s1, f2u(1.0 / 640), s1))
        e('v_mul_f32 v%d, %s, v%d' % (s2, f2u(1.0 / 640), s2))
        e('v_fma_f32 v%d, -v%d, v%d, v%d' % (s2, s1, s1, s2))
        e('v_max_f32 v%d, 0, v%d' % (s2, s2))
        e('v_cvt_pk_bf16_f32 v%d, 0, v%d' % (s2, s2))
        e('v_add_f32 v%d, %s, v%d' % (s2, f2u(1e-5), s2))
        e('v_cvt_pk_bf16_f32 v%d, 0, v%d' % (s2, s2))
        e('v_sqrt_f32 v%d, v%d' % (s2, s2))
        e('v_cvt_pk_bf16_f32 v%d, 0, v%d' % (s1, s1))
        e('v_cvt_pk_bf16_f32 v%d, 0, v%d' % (s2, s2))
        e('v_rcp_f32 v%d, v%d' % (s2, s2))

    e('s_cmp_ge_u32 s2, 0x100')
    e('s_cbranch_scc1 L_end')
    e('s_load_dwordx16 s[16:31], s[0:1], 0')
    e('s_load_dwordx8 s[32:39], s[0:1], 64')
    e('s_load_dwordx2 s[40:41], s[0:1], 96')
    e('v_and_b32 v1, 63, v0')
    e('v_lshrrev_b32 v3, 6, v0')
    e('v_readfirstlane_b32 s%d, v3' % sW)
    if P.get('xcdmap', 0):
        e('s_and_b32 s%d, s2, 7' % sH)
        e('s_lshl_b32 s%d, s%d, 2' % (sH, sH))
        e('s_bfe_u32 s%d, s2, 0x20003' % sS)
        e('s_add_u32 s%d, s%d, s%d' % (sH, sH, sS))
        e('s_lshr_b32 s%d, s2, 5' % sS)
    else:
        e('s_lshr_b32 s%d, s2, 3' % sH)
        e('s_and_b32 s%d, s2, 7' % sS)
    e('s_mul_i32 s%d, s2, 205' % sR)
    e('s_lshr_b32 s%d, s%d, 11' % (sR, sR))
    e('s_mul_i32 s%d, s%d, 10' % (sCB, sR))
    e('s_sub_u32 s%d, s2, s%d' % (sCB, sCB))
    for i in range(1, 8):
        e('s_mov_b32 s%d, %d' % (4 + i, 3072 * i))
    e('s_mul_i32 s%d, s%d, 6291456' % (sA, sH))
    e('s_mul_i32 s%d, s%d, 196608' % (sB, sS))
    e('s_add_u32 s%d, s%d, s%d' % (sA, sA, sB))
    e('s_add_u32 s%d, s%d, %d' % (sA, sA, 12288 * 384))
    e('s_mul_i32 s%d, s%d, %d' % (sB, sS, 80 * 12288))
    e('s_mul_i32 s%d, s%d, 384' % (sC, sH))
    e('s_add_u32 s%d, s%d, s%d' % (sB, sB, sC))
    for n in (SX, SK, SV, SWQ, SWO, SWS, SW1, SB1, SW2, SOUT, SB2):
        e('s_mov_b32 s%d, 0x00020000' % (n + 3))
    for n, sz in ((SX, 1280), (SK, 196608), (SV, 196608), (SWQ, 79 * 12288 + 384), (SWO, 255 * 1280 + 128),
                  (SWS, WS_SIZE), (SW1, 3072), (SB1, 3072), (SW2, 3072), (SOUT, 1280), (SB2, 2)):
        e('s_mov_b32 s%d, %d' % (n + 2, sz))
    e('s_waitcnt lgkmcnt(0)')
    e('s_load_dword s%d, s[40:41], 0' % sE)
    e('s_mov_b64 s[%d:%d], s[16:17]' % (SX, SX + 1))
    e('s_add_u32 s%d, s22, s%d' % (SWQ, sB))
    e('s_addc_u32 s%d, s23, 0' % (SWQ + 1))
    e('s_add_u32 s%d, s18, s%d' % (SK, sA))
    e('s_addc_u32 s%d, s19, 0' % (SK + 1))
    e('s_add_u32 s%d, s20, s%d' % (SV, sA))
    e('s_addc_u32 s%d, s21, 0' % (SV + 1))
    e('s_min_u32 s%d, s%d, 23' % (sA, sR))
    e('s_mul_i32 s%d, s%d, %d' % (sA, sA, 256 * 1280))
    e('s_lshl_b32 s%d, s%d, 7' % (sB, sCB))
    e('s_add_u32 s%d, s%d, s%d' % (sA, sA, sB))
    e('s_add_u32 s%d, s24, s%d' % (SWO, sA))
    e('s_addc_u32 s%d, s25, 0' % (SWO + 1))
    e('s_mov_b64 s[%d:%d], s[40:41]' % (SWS, SWS + 1))
    e('s_mov_b64 s[%d:%d], s[28:29]' % (SW1, SW1 + 1))
    e('s_mov_b64 s[%d:%d], s[30:31]' % (SB1, SB1 + 1))
    e('s_mov_b64 s[%d:%d], s[32:33]' % (SW2, SW2 + 1))
    e('s_mov_b64 s[%d:%d], s[36:37]' % (SOUT, SOUT + 1))
    e('s_mov_b64 s[%d:%d], s[34:35]' % (SB2, SB2 + 1))
    e('s_cmp_eq_u32 s%d, 8' % sW)
    e('s_cbranch_scc1 L_comm')

    stamp('start')
    XA = ACC
    e('v_lshlrev_b32 v4, 4, v1')
    e('v_lshlrev_b32 v5, 2, v1')
    e('buffer_load_dwordx4 %s, v4, %s, 0 offen' % (vr(XA, 4), srd(SX)), 'x')
    e('buffer_load_dword v%d, v5, %s, 0 offen offset:1024' % (XA + 4, srd(SX)), 'x')
    e('v_mul_u32_u24 v3, 2731, v0')
    e('v_lshrrev_b32 v3, 16, v3')
    e('v_mul_u32_u24 v4, 24, v3')
    e('v_sub_u32 v4, v0, v4')
    e('s_mul_i32 s%d, s%d, 160' % (sA, sS))
    e('v_lshlrev_b32 v6, 1, v3')
    for k in range(4):
        e('buffer_load_ushort v%d, v6, %s, s%d offen offset:%d' % (XA + 5 + k, srd(SX), sA, 40 * k), 'x')
    e('v_mul_u32_u24 v7, 12288, v3')
    e('v_lshl_add_u32 v7, v4, 4, v7')
    e('v_mov_b32 v5, 0x80000000')
    e('v_cmp_gt_u32 vcc, 480, v0')
    e('s_mov_b32 s%d, %d' % (sA, 245760))
    e('s_mov_b32 s%d, %d' % (sB, 2 * 245760))
    e('s_mov_b32 s%d, %d' % (sC, 3 * 245760))
    e('v_cndmask_b32 v7, v5, v7, vcc')
    for k, so in enumerate(('0', 's%d' % sA, 's%d' % sB, 's%d' % sC)):
        e('buffer_load_dwordx4 %s, v7, %s, %s offen%s' % (vr(WB + 4 * k, 4), srd(SWQ), so, NTW), 'wq%d' % k)
    e('v_lshrrev_b32 v2, 3, v1')
    e('v_mul_u32_u24 v2, 384, v2')
    e('v_and_b32 v3, 7, v1')
    e('v_lshl_add_u32 v2, v3, 4, v2')
    e('s_mul_i32 s%d, s%d, %d' % (sA, sW, 64 * 384))
    e('v_add_u32 v2, s%d, v2' % sA)

    def kvload(S, i, tag):
        so = 's%d' % (4 + i) if i else '0'
        for c in range(3):
            e('buffer_load_dwordx4 %s, v2, %s, %s offen offset:%d%s' % (vr(KV + 12 * i + 4 * c, 4), srd(S), so, 128 * c, NT),
              '%s%d' % (tag, i))

    for i in range(NPRE):
        kvload(SK, i, 'k')
    a.vwait('x')
    S1, S2 = ACC + 10, ACC + 11
    e('v_mov_b32 v3, 0x3f803f80')
    for k in range(5):
        e('v_dot2_f32_bf16 v%d, v%d, v3, %s' % (S1, XA + k, 'v%d' % S1 if k else '0'))
        e('v_dot2_f32_bf16 v%d, v%d, v%d, %s' % (S2, XA + k, XA + k, 'v%d' % S2 if k else '0'))
    for k in range(4):
        e('v_lshlrev_b32 v%d, 16, v%d' % (XA + 5 + k, XA + 5 + k))
    allred([S1, S2], 'v_add_f32', [1, 2, 4, 8, 16, 32], TMP)
    ln_stats(S1, S2, TMP)
    XL = SC
    for k in range(4):
        e('v_sub_f32 v%d, v%d, v%d' % (XA + 5 + k, XA + 5 + k, S1))
    for k in range(4):
        e('v_cvt_pk_bf16_f32 v%d, 0, v%d' % (XA + 5 + k, XA + 5 + k))
    for k in range(4):
        e('v_mul_f32 v%d, v%d, v%d' % (XA + 5 + k, XA + 5 + k, S2))
    for k in range(4):
        e('v_cvt_pk_bf16_f32 v%d, v%d, 0' % (XL + k, XA + 5 + k))
        e('v_cvt_pk_bf16_f32 v%d, 0, v%d' % (XL + 4 + k, XA + 5 + k))
    QA = ACC + 12
    for k in range(4):
        a.vwait('wq%d' % k)
        for j in range(4):
            e('v_dot2_f32_bf16 v%d, v%d, v%d, %s' % (QA + 2 * j, WB + 4 * k + j, XL + k, 'v%d' % (QA + 2 * j) if k else '0'))
            e('v_dot2_f32_bf16 v%d, v%d, v%d, %s' % (QA + 2 * j + 1, WB + 4 * k + j, XL + 4 + k, 'v%d' % (QA + 2 * j + 1) if k else '0'))
    e('v_lshlrev_b32 v3, 5, v0')
    e('ds_write_b128 v3, %s offset:%d' % (vr(QA, 4), L_QP))
    e('ds_write_b128 v3, %s offset:%d' % (vr(QA + 4, 4), L_QP + 16))
    e('s_waitcnt lgkmcnt(0)')
    e('s_barrier')
    stamp('B1')
    for i in range(NPRE, 8):
        kvload(SK, i, 'k')
    tags()
    e('v_and_b32 v3, 7, v1')
    e('v_lshlrev_b32 v3, 4, v3')
    stamp('Kissued')
    e('s_barrier')
    stamp('B2')
    for c in range(3):
        e('ds_read_b128 %s, v3 offset:%d' % (vr(QR + 4 * c, 4), L_QB + 128 * c))
    e('s_waitcnt lgkmcnt(0)')
    NVK = P.get('nvk', 8)
    for i in range(8):
        a.vwait('k%d' % i)
        for j in range(4):
            for c in range(3):
                d = SC + i if c == 0 else TMP + c
                e('v_dot2_f32_bf16 v%d, v%d, v%d, %s' % (d, KV + 12 * i + 4 * c + j, QR + 4 * c + j, 'v%d' % d if j else '0'))
        if i < NVK:
            kvload(SV, i, 'v')
        e('v_add_f32 v%d, v%d, v%d' % (SC + i, SC + i, TMP + 1))
        e('v_add_f32 v%d, v%d, v%d' % (SC + i, SC + i, TMP + 2))
    stamp('Kdone')
    allred(list(range(SC, SC + 8)), 'v_add_f32', [1, 2, 4], TMP)
    for i in range(8):
        e('v_cvt_pk_bf16_f32 v%d, 0, v%d' % (SC + i, SC + i))
    for i in range(8):
        e('v_mul_f32 v%d, %s, v%d' % (SC + i, f2u(192 ** -0.5), SC + i))
    for i in range(8):
        e('v_cvt_pk_bf16_f32 v%d, 0, v%d' % (SC + i, SC + i))
    e('v_max3_f32 v4, v%d, v%d, v%d' % (SC, SC + 1, SC + 2))
    e('v_max3_f32 v5, v%d, v%d, v%d' % (SC + 3, SC + 4, SC + 5))
    e('v_max3_f32 v4, v4, v%d, v%d' % (SC + 6, SC + 7))
    e('v_max_f32 v4, v4, v5')
    allred([4], 'v_max_f32', [8, 16, 32], TMP)
    for i in range(8):
        e('v_sub_f32 v%d, v%d, v4' % (SC + i, SC + i))
    for i in range(8):
        e('v_mul_f32 v%d, %s, v%d' % (SC + i, f2u(LOG2E), SC + i))
    for i in range(8):
        e('v_exp_f32 v%d, v%d' % (SC + i, SC + i))
    e('v_add_f32 v5, v%d, v%d' % (SC, SC + 1))
    for i in range(2, 8):
        e('v_add_f32 v5, v5, v%d' % (SC + i))
    allred([5], 'v_add_f32', [8, 16, 32], TMP)
    e('s_lshl_b32 s%d, s%d, 3' % (sA, sW))
    e('v_mov_b32 v3, s%d' % sA)
    e('ds_write_b64 v3, v[4:5] offset:%d' % L_ML)

    def woload():
        e('v_lshrrev_b32 v6, 3, v1')
        e('v_mul_u32_u24 v6, 5120, v6')
        e('v_and_b32 v7, 7, v1')
        e('v_lshl_add_u32 v6, v7, 4, v6')
        e('s_mul_i32 s%d, s%d, %d' % (sA, sW, 32 * 1280))
        e('s_cmp_ge_u32 s2, 240')
        e('s_cselect_b32 s%d, 0x40000000, s%d' % (sA, sA))
        e('v_add_u32 v6, s%d, v6' % sA)
        for k in range(4):
            e('buffer_load_dwordx4 %s, v6, %s, 0 offen offset:%d%s' % (vr(WB + 4 * k, 4), srd(SWO), 1280 * k, NTW), 'wo')
        e('v_lshlrev_b32 v7, 1, v0')
        for n, S in enumerate((SW1, SB1, SW2)):
            for k in range(3):
                e('buffer_load_ushort v%d, v7, %s, 0 offen offset:%d' % (QR + 3 * n + k, srd(S), 1024 * k), 'mw')

    WOAT = P.get('woat', 0)
    nissued = NVK
    for i in range(8):
        if nissued < 8:
            kvload(SV, nissued, 'v')
            nissued += 1
        if i == max(WOAT, 7 - NVK):
            woload()
        e('v_cvt_pk_bf16_f32 v%d, v%d, 0' % (TMP, SC + i))
        e('v_cvt_pk_bf16_f32 v%d, 0, v%d' % (TMP + 1, SC + i))
        a.vwait('v%d' % i)
        for n in range(12):
            for hh in range(2):
                d = ACC + 2 * n + hh
                e('v_dot2_f32_bf16 v%d, v%d, v%d, %s' % (d, KV + 12 * i + n, TMP + hh, 'v%d' % d if i else '0'))
    stamp('Vdone')
    for i in range(12):
        e('v_permlane32_swap_b32 v%d, v%d' % (ACC + i, ACC + 12 + i))
    for i in range(12):
        e('v_add_f32 v%d, v%d, v%d' % (ACC + i, ACC + i, ACC + 12 + i))
    for i in range(6):
        e('v_permlane16_swap_b32 v%d, v%d' % (ACC + i, ACC + 6 + i))
    for i in range(6):
        e('v_add_f32 v%d, v%d, v%d' % (ACC + i, ACC + i, ACC + 6 + i))
    e('v_and_b32 v3, 7, v1')
    e('v_mul_u32_u24 v3, 96, v3')
    e('v_lshrrev_b32 v4, 4, v1')
    e('v_mad_u32_u24 v3, v4, 24, v3')
    e('s_mul_i32 s%d, s%d, 768' % (sA, sW))
    e('v_add_u32 v3, s%d, v3' % sA)
    allred(list(range(ACC, ACC + 6)), 'v_add_f32', [8], TMP)
    for i in range(3):
        e('ds_write_b64 v3, %s offset:%d' % (vr(ACC + 2 * i, 2), L_OP + 8 * i))
    e('s_waitcnt lgkmcnt(0)')
    e('s_barrier')
    stamp('B3')
    e('s_cmp_ge_u32 s2, 240')
    e('s_cbranch_scc1 L_stream_end')
    e('s_lshl_b32 s%d, s%d, 3' % (sA, sR))
    e('s_add_u32 s%d, s%d, s%d' % (sA, sA, sW))
    e('s_mul_i32 s%d, s%d, 171' % (sB, sA))
    e('s_lshr_b32 s%d, s%d, 10' % (sB, sB))
    e('s_mul_i32 s%d, s%d, 6' % (sC, sB))
    e('s_sub_u32 s%d, s%d, s%d' % (sA, sA, sC))
    e('s_lshl_b32 s%d, s%d, 7' % (sA, sA))
    e('s_lshl_b32 s%d, s%d, 13' % (sB, sB))
    e('s_add_u32 s%d, s%d, %d' % (sB, sB, OX))
    e('s_add_u32 s%d, s%d, s%d' % (sA, sA, sB))
    e('v_and_b32 v3, 7, v1')
    e('v_lshlrev_b32 v3, 10, v3')
    e('v_lshrrev_b32 v4, 3, v1')
    e('v_lshl_add_u32 v4, v4, 4, v3')
    G0, G1, GT = KV, KV + 4, KV + 8
    poll('h1ml', ['buffer_load_dwordx4 %s, v3, %s, s%d offen offset:768 sc1' % (vr(G1, 4), srd(SWS), sB)], [G1], GT)
    e('v_and_b32 v%d, 0xffff0000, v%d' % (G1, G1))
    e('v_mov_b32 v5, v%d' % G1)
    allred([5], 'v_max_f32', [1, 2, 4], TMP)
    e('v_sub_f32 v5, v%d, v5' % G1)
    e('v_mul_f32 v5, %s, v5' % f2u(LOG2E))
    e('v_exp_f32 v5, v5')
    e('v_mul_f32 v6, v5, v%d' % (G1 + 1))
    allred([6], 'v_add_f32', [1, 2, 4], TMP)
    e('v_rcp_f32 v6, v6')
    e('v_mul_f32 v5, v5, v6')
    for n in range(9):
        e('v_lshlrev_b32 v%d, 16, v%d' % (QR + n, QR + n))
    poll('h1o', ['buffer_load_dwordx4 %s, v4, %s, s%d offen sc1' % (vr(G0, 4), srd(SWS), sA)], [G0], GT)
    stamp('h1')
    for k in range(4):
        e('v_mul_f32 v%d, v5, v%d' % (G0 + k, G0 + k))
    allred(list(range(G0, G0 + 4)), 'v_add_f32', [1, 2, 4], TMP)
    for k in range(4):
        e('v_cvt_pk_bf16_f32 v%d, v%d, 0' % (SC + k, G0 + k))
        e('v_cvt_pk_bf16_f32 v%d, 0, v%d' % (SC + 4 + k, G0 + k))
    for k in range(4):
        for j in range(4):
            e('v_dot2_f32_bf16 v%d, v%d, v%d, %s' % (ACC + 2 * j, WB + 4 * k + j, SC + k, 'v%d' % (ACC + 2 * j) if k else '0'))
            e('v_dot2_f32_bf16 v%d, v%d, v%d, %s' % (ACC + 2 * j + 1, WB + 4 * k + j, SC + 4 + k, 'v%d' % (ACC + 2 * j + 1) if k else '0'))
    e('v_and_b32 v3, 7, v1')
    e('v_lshlrev_b32 v3, 5, v3')
    e('v_lshrrev_b32 v4, 4, v1')
    e('v_lshl_add_u32 v3, v4, 3, v3')
    e('s_lshl_b32 s%d, s%d, 8' % (sA, sW))
    e('v_add_u32 v3, s%d, v3' % sA)
    for i in range(4):
        e('v_permlane32_swap_b32 v%d, v%d' % (ACC + i, ACC + 4 + i))
    for i in range(4):
        e('v_add_f32 v%d, v%d, v%d' % (ACC + i, ACC + i, ACC + 4 + i))
    for i in range(2):
        e('v_permlane16_swap_b32 v%d, v%d' % (ACC + i, ACC + 2 + i))
    for i in range(2):
        e('v_add_f32 v%d, v%d, v%d' % (ACC + i, ACC + i, ACC + 2 + i))
    allred([ACC, ACC + 1], 'v_add_f32', [8], TMP)
    e('ds_write_b64 v3, %s offset:%d' % (vr(ACC, 2), L_YP))
    e('s_waitcnt lgkmcnt(0)')
    e('s_barrier')
    stamp('B4')
    e('s_cmp_ge_u32 s2, 214')
    e('s_cbranch_scc1 L_stream_end')
    e('s_mul_i32 s%d, s2, 12' % sA)
    e('v_mov_b32 v3, s%d' % sA)
    K0 = -2.0 * 0.7978845608028654 * LOG2E
    e('v_mov_b32 v6, %s' % f2u(K0))
    e('s_mov_b32 s%d, %s' % (sB, f2u(K0 * 0.044715)))
    e('s_lshl_b32 s%d, s%d, 4' % (sA, sW))
    e('v_lshrrev_b32 v4, 4, v1')
    e('v_lshl_add_u32 v4, v4, 2, s%d' % sA)
    e('s_barrier')
    stamp('B5')
    for i in range(3):
        e('ds_read_b32 v%d, v3 offset:%d' % (SC + i, L_HN + 4 * i))
    e('s_waitcnt lgkmcnt(0)')
    U, Z = KV, KV + 12
    idx = [(i, k) for i in range(3) for k in range(3)]
    for n, (i, k) in enumerate(idx):
        e('v_fma_f32 v%d, v%d, v%d, v%d' % (U + n, SC + i, QR + k, QR + 3 + k))
    for n in range(9):
        e('v_mul_f32 v%d, v%d, v%d' % (Z + n, U + n, U + n))
    for n in range(9):
        e('v_fma_f32 v%d, v%d, s%d, v6' % (Z + n, Z + n, sB))
    for n in range(9):
        e('v_mul_f32 v%d, v%d, v%d' % (Z + n, Z + n, U + n))
    for n, (i, k) in enumerate(idx):
        e('v_exp_f32 v%d, v%d' % (Z + n, Z + n))
        e('v_mul_f32 v%d, v%d, v%d' % (U + n, U + n, QR + 6 + k))
    for n in range(9):
        e('v_add_f32 v%d, 1.0, v%d' % (Z + n, Z + n))
    for n in range(9):
        e('v_rcp_f32 v%d, v%d' % (Z + n, Z + n))
    e('v_mov_b32 v%d, 0' % (ACC + 3))
    for k in range(3):
        for i in range(3):
            n = 3 * i + k
            if k == 0:
                e('v_mul_f32 v%d, v%d, v%d' % (ACC + i, U + n, Z + n))
            else:
                e('v_fma_f32 v%d, v%d, v%d, v%d' % (ACC + i, U + n, Z + n, ACC + i))
    e('v_permlane32_swap_b32 v%d, v%d' % (ACC, ACC + 2))
    e('v_permlane32_swap_b32 v%d, v%d' % (ACC + 1, ACC + 3))
    e('v_add_f32 v%d, v%d, v%d' % (ACC, ACC, ACC + 2))
    e('v_add_f32 v%d, v%d, v%d' % (ACC + 1, ACC + 1, ACC + 3))
    e('v_permlane16_swap_b32 v%d, v%d' % (ACC, ACC + 1))
    e('v_add_f32 v%d, v%d, v%d' % (ACC, ACC, ACC + 1))
    allred([ACC], 'v_add_f32', [1, 2, 4, 8], TMP)
    e('ds_write_b32 v4, v%d offset:%d' % (ACC, L_RED))
    e('s_waitcnt lgkmcnt(0)')
    e('s_barrier')
    e('L_stream_end:')
    e('s_waitcnt vmcnt(0)')
    if STAMP:
        e('s_cmp_lg_u32 s%d, 0' % sW)
        e('s_cbranch_scc1 L_end')
        dump_stamps(1)
    e('s_endpgm')

    e('L_comm:')
    a.vm = []
    stamps.clear()
    stamp('start')
    if P.get('prio', 1):
        e('s_setprio 3')
    VM = 2
    e('v_mov_b32 v%d, 0xfffff800' % VM)
    e('v_and_b32 v3, 15, v1')
    e('v_lshlrev_b32 v3, 2, v3')
    e('v_mov_b32 v4, 0')
    e('ds_write_b32 v3, v4 offset:%d' % L_ML)
    XO, B2R = 160, 162
    e('s_sub_u32 s%d, s2, 236' % sA)
    e('s_lshl_b32 s%d, s%d, 6' % (sA, sA))
    e('s_cmp_ge_u32 s2, 236')
    e('s_cselect_b32 s%d, s%d, 0' % (sA, sA))
    e('v_and_b32 v3, 7, v1')
    e('v_lshlrev_b32 v3, 3, v3')
    e('buffer_load_dwordx2 %s, v3, %s, s%d offen' % (vr(XO, 2), srd(SX), sA))
    e('buffer_load_ushort v%d, v4, %s, 0 offen' % (B2R, srd(SB2)))
    tags()
    e('v_lshlrev_b32 v3, 4, v1')
    e('s_mov_b32 exec_hi, 0xffff')
    e('s_lshl_b32 s%d, s%d, 3' % (sA, sH))
    e('s_mul_i32 s%d, s%d, 768' % (sB, sA))
    e('s_add_u32 s%d, s%d, %d' % (sB, sB, QX))
    e('s_add_u32 s%d, s%d, s%d' % (sA, sA, sS))
    e('s_lshl_b32 s97, s%d, 10' % sA)
    e('s_add_u32 s97, s97, %d' % OX)
    e('s_mul_i32 s%d, s%d, 768' % (sA, sA))
    e('s_add_u32 s%d, s%d, %d' % (sA, sA, QX))
    e('s_barrier')
    stamp('B1')
    R = 8
    for g in range(20):
        e('ds_read_b128 %s, v3 offset:%d' % (vr(R + 4 * g, 4), L_QP + 768 * g))
    e('s_waitcnt lgkmcnt(0)')
    n = 20
    while n > 1:
        hlf = n // 2
        for g in range(hlf):
            for k in (0, 2):
                e('v_pk_add_f32 %s, %s, %s' % (vr(R + 4 * g + k, 2), vr(R + 4 * g + k, 2), vr(R + 4 * (n - 1 - g) + k, 2)))
        n -= hlf
    tagins(R, VM)
    e('buffer_store_dwordx4 %s, v3, %s, s%d offen sc1' % (vr(R, 4), srd(SWS), sA))
    stamp('qpub')
    e('v_add_u32 v5, 3072, v3')
    G = 16
    poll('q', ['buffer_load_dwordx4 %s, v%d, %s, s%d offen offset:%d sc1' % (vr(G + 4 * s, 4), 3 if s < 4 else 5, srd(SWS), sB, 768 * (s % 4))
               for s in range(8)], [G + 4 * s for s in range(8)], 8)
    stamp('qgot')
    n = 8
    while n > 1:
        hlf = n // 2
        for g in range(hlf):
            for k in (0, 2):
                e('v_pk_add_f32 %s, %s, %s' % (vr(G + 4 * g + k, 2), vr(G + 4 * g + k, 2), vr(G + 4 * (n - 1 - g) + k, 2)))
        n -= hlf
    e('v_cvt_pk_bf16_f32 v%d, v%d, v%d' % (G, G, G + 1))
    e('v_cvt_pk_bf16_f32 v%d, v%d, v%d' % (G + 1, G + 2, G + 3))
    e('v_lshlrev_b32 v5, 3, v1')
    e('ds_write_b64 v5, %s offset:%d' % (vr(G, 2), L_QB))
    e('s_waitcnt lgkmcnt(0)')
    e('s_barrier')
    e('s_mov_b64 exec, -1')
    e('v_and_b32 v5, 7, v1')
    e('v_lshlrev_b32 v5, 3, v5')
    e('s_mov_b32 s%d, %d' % (sCNT, SPIN * 4))
    e('L_ml_poll:')
    e('ds_read_b64 v[8:9], v5 offset:%d' % L_ML)
    e('s_waitcnt lgkmcnt(0)')
    e('v_cmp_eq_u32 vcc, 0, v9')
    e('s_cbranch_vccz L_ml_ok')
    e('s_sleep 4')
    e('s_sub_u32 s%d, s%d, 1' % (sCNT, sCNT))
    e('s_cmp_lg_u32 s%d, 0' % sCNT)
    e('s_cbranch_scc1 L_ml_poll')
    e('L_ml_ok:')
    stamp('ml')
    e('v_mov_b32 v12, v8')
    allred([12], 'v_max_f32', [1, 2, 4], TMP)
    e('v_sub_f32 v10, v8, v12')
    e('v_mul_f32 v10, %s, v10' % f2u(LOG2E))
    e('v_exp_f32 v10, v10')
    e('v_mul_f32 v13, v10, v9')
    allred([13], 'v_add_f32', [1, 2, 4], TMP)
    e('v_mov_b32 v14, 0')
    e('v_mov_b32 v15, 0')
    tagins(12, VM)
    e('s_mov_b64 exec, 1')
    e('buffer_store_dwordx4 v[12:15], v3, %s, s97 offen offset:768 sc1' % srd(SWS))
    e('s_mov_b64 exec, -1')
    FW = 4
    for w in range(8):
        e('v_readlane_b32 s%d, v10, %d' % (FW + w, w))
    e('v_mul_u32_u24 v5, 43, v1')
    e('v_lshrrev_b32 v5, 8, v5')
    e('v_mul_u32_u24 v6, 6, v5')
    e('v_sub_u32 v6, v1, v6')
    e('v_lshlrev_b32 v5, 5, v5')
    e('v_and_b32 v7, 1, v6')
    e('v_lshl_add_u32 v5, v7, 4, v5')
    e('v_lshrrev_b32 v6, 1, v6')
    e('v_lshl_add_u32 v5, v6, 8, v5')
    e('s_mov_b32 exec_hi, 0xffff')
    e('s_barrier')
    stamp('B3')
    for w in range(8):
        e('ds_read_b128 %s, v3 offset:%d' % (vr(G + 4 * w, 4), L_OP + 768 * w))
    e('s_waitcnt lgkmcnt(0)')
    for w in range(8):
        base = 8 if w < 4 else 12
        for k in range(4):
            if w % 4 == 0:
                e('v_mul_f32 v%d, s%d, v%d' % (base + k, FW + w, G + 4 * w + k))
            else:
                e('v_fmac_f32 v%d, s%d, v%d' % (base + k, FW + w, G + 4 * w + k))
    for k in range(4):
        e('v_add_f32 v%d, v%d, v%d' % (8 + k, 8 + k, 12 + k))
    tagins(8, VM)
    e('buffer_store_dwordx4 v[8:11], v5, %s, s97 offen sc1' % srd(SWS))
    stamp('opub')
    e('s_cmp_ge_u32 s2, 240')
    e('s_cbranch_scc1 L_owner')
    e('s_mov_b64 exec, 0xffff')
    e('s_mul_i32 s%d, s%d, 24' % (sA, sCB))
    e('s_add_u32 s%d, s%d, s%d' % (sA, sA, sR))
    e('s_lshl_b32 s%d, s%d, 8' % (sA, sA))
    e('s_add_u32 s%d, s%d, %d' % (sA, sA, YX))
    e('s_barrier')
    for w in range(8):
        e('ds_read_b128 %s, v3 offset:%d' % (vr(G + 4 * w, 4), L_YP + 256 * w))
    e('s_waitcnt lgkmcnt(0)')
    n = 8
    while n > 1:
        hlf = n // 2
        for g in range(hlf):
            for k in (0, 2):
                e('v_pk_add_f32 %s, %s, %s' % (vr(G + 4 * g + k, 2), vr(G + 4 * g + k, 2), vr(G + 4 * (n - 1 - g) + k, 2)))
        n -= hlf
    tagins(G, VM)
    e('buffer_store_dwordx4 %s, v3, %s, s%d offen sc1' % (vr(G, 4), srd(SWS), sA))
    stamp('ypub')
    e('s_cmp_lt_u32 s2, 214')
    e('s_cbranch_scc1 L_final')
    e('s_cmp_lt_u32 s2, 236')
    e('s_cbranch_scc1 L_comm_end')
    e('L_owner:')
    e('s_mov_b64 exec, -1')
    e('s_sub_u32 s%d, s2, 236' % sA)
    e('s_lshr_b32 s%d, s%d, 1' % (sB, sA))
    e('s_mul_i32 s%d, s%d, %d' % (sB, sB, 24 * 256))
    e('s_and_b32 s%d, s%d, 1' % (sC, sA))
    e('s_lshl_b32 s%d, s%d, 7' % (sC, sC))
    e('s_add_u32 s%d, s%d, s%d' % (sB, sB, sC))
    e('s_add_u32 s%d, s%d, %d' % (sB, sB, YX))
    e('s_lshl_b32 s%d, s%d, 7' % (sA, sA))
    e('s_add_u32 s%d, s%d, %d' % (sA, sA, HX))
    e('v_lshrrev_b32 v5, 3, v1')
    e('v_lshlrev_b32 v5, 8, v5')
    e('v_and_b32 v6, 7, v1')
    e('v_lshl_add_u32 v5, v6, 4, v5')
    e('v_add_u32 v6, 4096, v5')
    G = 24
    poll('y', ['buffer_load_dwordx4 %s, v5, %s, s%d offen sc1' % (vr(G, 4), srd(SWS), sB),
               'buffer_load_dwordx4 %s, v5, %s, s%d offen offset:2048 sc1' % (vr(G + 4, 4), srd(SWS), sB),
               'buffer_load_dwordx4 %s, v6, %s, s%d offen sc1' % (vr(G + 8, 4), srd(SWS), sB)], [G, G + 4, G + 8], 8)
    st_owner = len(stamps)
    stamp('ygot')
    for k in range(4):
        e('v_add_f32 v%d, v%d, v%d' % (G + k, G + k, G + 4 + k))
    for k in range(4):
        e('v_add_f32 v%d, v%d, v%d' % (G + k, G + k, G + 8 + k))
    allred(list(range(G, G + 4)), 'v_add_f32', [8, 16, 32], 8)
    e('v_lshlrev_b32 v8, 16, v%d' % XO)
    e('v_and_b32 v9, 0xffff0000, v%d' % XO)
    e('v_lshlrev_b32 v10, 16, v%d' % (XO + 1))
    e('v_and_b32 v11, 0xffff0000, v%d' % (XO + 1))
    for k in range(4):
        e('v_cvt_pk_bf16_f32 v%d, 0, v%d' % (G + k, G + k))
    for k in range(4):
        e('v_add_f32 v%d, v%d, v%d' % (G + k, G + k, 8 + k))
    for k in range(4):
        e('v_cvt_pk_bf16_f32 v%d, 0, v%d' % (G + k, G + k))
    for k in range(4):
        e('v_or_b32 v%d, s%d, v%d' % (G + k, T0 + k, G + k))
    e('s_mov_b64 exec, 0xff')
    e('buffer_store_dwordx4 %s, v3, %s, s%d offen sc1' % (vr(G, 4), srd(SWS), sA))
    stamp('hpub')
    e('s_branch L_comm_end')
    e('L_final:')
    del stamps[st_owner:]
    e('s_mov_b64 exec, -1')
    e('v_and_b32 v5, 31, v1')
    e('v_lshlrev_b32 v5, 4, v5')
    e('s_mov_b32 s%d, %d' % (sA, HX))
    G = 24
    poll('h', ['buffer_load_dwordx4 %s, v3, %s, s%d offen sc1' % (vr(G, 4), srd(SWS), sA),
               'buffer_load_dwordx4 %s, v3, %s, s%d offen offset:1024 sc1' % (vr(G + 4, 4), srd(SWS), sA),
               'buffer_load_dwordx4 %s, v5, %s, s%d offen offset:2048 sc1' % (vr(G + 8, 4), srd(SWS), sA)], [G, G + 4, G + 8], 8)
    stamp('hgot')
    for k in range(12):
        e('v_and_b32 v%d, 0xffff0000, v%d' % (G + k, G + k))
    for k in range(3):
        e('ds_write_b128 v%d, %s offset:%d' % (3 if k < 2 else 5, vr(G + 4 * k, 4), L_H + 1024 * k))
    src = G
    for rnd in range(2):
        e('v_add_f32 v8, v%d, v%d' % (src + 8, src + 9))
        e('v_mul_f32 v9, v%d, v%d' % (src + 8, src + 8))
        e('v_add_f32 v10, v%d, v%d' % (src, src + 1))
        e('v_mul_f32 v11, v%d, v%d' % (src, src))
        e('v_add_f32 v8, v8, v%d' % (src + 10))
        e('v_fmac_f32 v9, v%d, v%d' % (src + 9, src + 9))
        e('v_add_f32 v8, v8, v%d' % (src + 11))
        e('v_fmac_f32 v9, v%d, v%d' % (src + 10, src + 10))
        e('v_fmac_f32 v11, v%d, v%d' % (src + 1, src + 1))
        e('v_fmac_f32 v9, v%d, v%d' % (src + 11, src + 11))
        for k in range(2, 8):
            e('v_add_f32 v10, v10, v%d' % (src + k))
            e('v_fmac_f32 v11, v%d, v%d' % (src + k, src + k))
        e('v_fma_f32 v8, v8, 0.5, v10')
        e('v_fma_f32 v9, v9, 0.5, v11')
        allred([8, 9], 'v_add_f32', [1, 2, 4, 8, 16, 32], 10)
        ln_stats(8, 9, 10)
        dst = 40
        for k in range(12):
            e('v_sub_f32 v%d, v%d, v8' % (dst + k, src + k))
        for k in range(12):
            e('v_cvt_pk_bf16_f32 v%d, 0, v%d' % (dst + k, dst + k))
        for k in range(12):
            e('v_mul_f32 v%d, v%d, v9' % (dst + k, dst + k))
        for k in range(12):
            e('v_cvt_pk_bf16_f32 v%d, 0, v%d' % (dst + k, dst + k))
        src = dst
    for k in range(3):
        e('ds_write_b128 v%d, %s offset:%d' % (3 if k < 2 else 5, vr(src + 4 * k, 4), L_HN + 1024 * k))
    e('s_waitcnt lgkmcnt(0)')
    e('s_barrier')
    stamp('B5')
    e('s_cmp_lg_u32 s2, 0')
    e('s_cbranch_scc1 L_noep')
    e('s_add_u32 s%d, s%d, 1' % (sA, sE))
    e('v_mov_b32 v8, s%d' % sA)
    e('s_mov_b64 exec, 1')
    e('buffer_store_dword v8, v3, %s, 0 offen' % srd(SWS))
    e('L_noep:')
    e('s_mov_b64 exec, 7')
    e('s_mul_i32 s%d, s2, 3' % sA)
    e('v_add_u32 v6, s%d, v1' % sA)
    e('v_lshlrev_b32 v7, 2, v6')
    e('ds_read_b32 v20, v7 offset:%d' % L_H)
    e('v_lshlrev_b32 v6, 1, v6')
    e('v_lshlrev_b32 v5, 2, v1')
    e('v_lshlrev_b32 v%d, 16, v%d' % (B2R, B2R))
    e('s_barrier')
    for w in range(0, 8, 2):
        e('ds_read_b32 v%d, v5 offset:%d' % (8 + w, L_RED + 16 * w))
        e('ds_read_b32 v%d, v5 offset:%d' % (9 + w, L_RED + 16 * w + 16))
    e('s_waitcnt lgkmcnt(0)')
    for k in range(4):
        e('v_add_f32 v%d, v%d, v%d' % (8 + k, 8 + k, 12 + k))
    e('v_add_f32 v8, v8, v10')
    e('v_add_f32 v9, v9, v11')
    e('v_add_f32 v8, v8, v9')
    e('v_cvt_pk_bf16_f32 v8, 0, v8')
    e('v_add_f32 v8, v8, v%d' % B2R)
    e('v_cvt_pk_bf16_f32 v8, 0, v8')
    e('v_add_f32 v8, v8, v20')
    e('v_cvt_pk_bf16_f32 v8, v8, 0')
    e('buffer_store_short v8, v6, %s, 0 offen' % srd(SOUT))
    stamp('out')
    e('L_comm_end:')
    dump_stamps(0)
    e('L_end:')
    e('s_endpgm')

    ref = open('cdna_kernels/%s.s.ref' % NAME).read().split('\n')
    head = [l for l in ref if l.startswith(';') and '@launch grid' not in l]
    out = '\n'.join(head) + '\n'
    for sl in sorted(stampnames):
        out += '; stamps %d: %s\n' % (sl, ' '.join(stampnames[sl]))
    out += '; @launch grid=(256,1,1) block=(576,1,1) lds=%d\n' % LDS_SIZE
    out += '.amdgcn_target "amdgcn-amd-amdhsa--gfx950"\n.text\n.globl %s_kernel\n.p2align 8\n.type %s_kernel,@function\n%s_kernel:\n' % (NAME, NAME, NAME)
    out += a.text()
    out += '''.section .rodata,"a"
.p2align 6
.amdhsa_kernel %s_kernel
  .amdhsa_next_free_vgpr %d
  .amdhsa_next_free_sgpr 102
  .amdhsa_accum_offset %d
  .amdhsa_group_segment_fixed_size 0
  .amdhsa_kernarg_size 104
  .amdhsa_user_sgpr_count 2
  .amdhsa_user_sgpr_kernarg_segment_ptr 1
  .amdhsa_system_sgpr_workgroup_id_x 1
.end_amdhsa_kernel
''' % (NAME, NV, NV)
    return out


if __name__ == '__main__':
    P = {}
    outp = 'cdna_kernels/%s.s' % NAME
    for arg in sys.argv[1:]:
        k, v = arg.split('=')
        if k == 'out':
            outp = v
        else:
            P[k] = int(v, 0)
    for x in range(192):
        assert (x * 171) >> 10 == x // 6
    for x in range(256):
        assert (x * 205) >> 11 == x // 10
    for x in range(512):
        assert (x * 2731) >> 16 == x // 24
    for x in range(48):
        assert (x * 43) >> 8 == x // 6
    open(outp, 'w').write(gen(P))
```

```python
import sys, struct, os
sys.path.insert(0, os.path.dirname(os.path.abspath(__file__)))
from asmlib import Asm

NAME = 'sequential_preLN__sliding_block_cached__mixer_token_mlp__decode'


def f2u(x):
    return '0x%08x' % struct.unpack('<I', struct.pack('<f', x))[0]


LOG2E = 1.4426950408889634
QX, OX, YX, HX, TS = 0x1000, 0x50000, 0xA0000, 0xB0000, 0xC0000
WS_SIZE = 0x100000
L_QP = 0
L_QB = 16896
L_ML = 17408
L_OP = 17920
L_YP = 24064
L_HN = 26112
L_H = 28928
L_RED = 31744
LDS_SIZE = 32768
sW, sH, sS = 3, 12, 13
SX, SK, SV, SWQ, SWO, SWS, SW1, SB1, SW2, SOUT, SB2 = 44, 48, 52, 56, 60, 64, 68, 72, 76, 80, 84
T0, sE = 88, 92
sCNT, sA, sB, sC = 93, 94, 95, 96
sR, sCB = 14, 15
KV, WB, QR, ACC, SC = 8, 104, 120, 132, 156
TMP = 164
NV = 168
DP = 'row_mask:0xf bank_mask:0xf'


def srd(n):
    return 's[%d:%d]' % (n, n + 3)


def vr(a, n):
    return 'v[%d:%d]' % (a, a + n - 1) if n > 1 else 'v%d' % a


def gen(P):
    a = Asm()
    e = a.e
    NT = ' nt' if P.get('nt', 1) else ''
    NTW = ' nt' if P.get('ntw', 1) else ''
    NPRE = P.get('npre', 2)
    SPIN = P.get('spin', 1 << 20)
    STAMP = P.get('stamp', 0)
    SLP = P.get('sleep', 1)
    stamps = []
    stampnames = {}

    def stamp(name):
        if STAMP:
            r = 16 + 2 * len(stamps)
            assert r <= 40
            e('s_memrealtime s[%d:%d]' % (r, r + 1))
            stamps.append(name)

    def dump_stamps(slot):
        if not STAMP:
            return
        e('s_waitcnt lgkmcnt(0)')
        e('s_mov_b64 exec, -1')
        e('v_mov_b32 v4, 0')
        for i in range(len(stamps)):
            e('v_writelane_b32 v4, s%d, %d' % (16 + 2 * i, i))
        if STAMP == 2:
            stampnames[slot] = list(stamps)
            if slot == 1:
                return
            e('s_cmp_ge_u32 s2, 214')
            e('s_cbranch_scc1 L_end')
            e('s_not_b32 s16, s16')
            e('v_writelane_b32 v4, s16, 15')
            e('s_load_dwordx2 s[%d:%d], s[0:1], 88' % (SX, SX + 1))
            e('s_mov_b32 s%d, 64' % (SX + 2))
            e('v_lshlrev_b32 v5, 2, v1')
            e('s_mov_b64 exec, 0xffff')
            e('s_waitcnt lgkmcnt(0)')
            e('buffer_atomic_umax v4, v5, %s, 0 offen sc1' % srd(SX))
            return
        e('s_lshl_b32 s%d, s2, 7' % sA)
        e('s_add_u32 s%d, s%d, %d' % (sA, sA, TS + slot * 64))
        e('v_lshlrev_b32 v5, 2, v1')
        e('s_mov_b64 exec, 0xffff')
        e('buffer_store_dword v4, v5, %s, s%d offen' % (srd(SWS), sA))
        stampnames[slot] = list(stamps)

    def allred(regs, op, steps, tmp):
        for st in steps:
            if st in (1, 2, 4, 8):
                ctl = {1: 'quad_perm:[1,0,3,2]', 2: 'quad_perm:[2,3,0,1]', 4: 'row_half_mirror', 8: 'row_ror:8'}[st]
                for r in regs:
                    e('%s_dpp v%d, v%d, v%d %s %s' % (op, r, r, r, ctl, DP))
            else:
                for i, r in enumerate(regs):
                    e('v_mov_b32 v%d, v%d' % (tmp + i, r))
                for i, r in enumerate(regs):
                    e('v_permlane%d_swap_b32 v%d, v%d' % (st, r, tmp + i))
                for i, r in enumerate(regs):
                    e('%s v%d, v%d, v%d' % (op, r, r, tmp + i))

    def tagins(r, vmask):
        for k in range(4):
            e('v_and_or_b32 v%d, v%d, v%d, s%d' % (r + k, r + k, vmask, T0 + k))

    def tagchk(rs, t):
        for n, r in enumerate(rs):
            for k in range(4):
                e('v_xor_b32 v%d, s%d, v%d' % (t + 1 + k if n else t + k, T0 + k, r + k))
            if n == 0:
                e('v_or3_b32 v%d, v%d, v%d, v%d' % (t, t, t + 1, t + 2))
                e('v_or_b32 v%d, v%d, v%d' % (t, t, t + 3))
            else:
                e('v_or3_b32 v%d, v%d, v%d, v%d' % (t, t, t + 1, t + 2))
                e('v_or3_b32 v%d, v%d, v%d, v%d' % (t, t, t + 3, t + 4))
        e('v_and_b32 v%d, 0x7ff, v%d' % (t, t))
        e('v_cmp_ne_u32 vcc, 0, v%d' % t)

    def poll(name, loads, rs, t, sleep=SLP):
        e('s_mov_b32 s%d, %d' % (sCNT, SPIN))
        e('%s_poll:' % name)
        for l in loads:
            e(l)
        a.vwait0()
        tagchk(rs, t)
        e('s_cbranch_vccz %s_ok' % name)
        if sleep:
            e('s_sleep %d' % sleep)
        e('s_sub_u32 s%d, s%d, 1' % (sCNT, sCNT))
        e('s_cmp_lg_u32 s%d, 0' % sCNT)
        e('s_cbranch_scc1 %s_poll' % name)
        e('%s_ok:' % name)

    def tags():
        e('s_waitcnt lgkmcnt(0)')
        e('s_and_b32 s%d, s%d, 0x7ff' % (T0, sE))
        e('s_xor_b32 s%d, s%d, 0x2a5' % (T0 + 1, T0))
        e('s_lshr_b32 s%d, s%d, 11' % (T0 + 2, sE))
        e('s_and_b32 s%d, s%d, 0x7ff' % (T0 + 2, T0 + 2))
        e('s_lshr_b32 s%d, s%d, 22' % (T0 + 3, sE))
        e('s_xor_b32 s%d, s%d, 0x4d3' % (T0 + 3, T0 + 3))

    def ln_stats(s1, s2, t):
        e('v_mul_f32 v%d, %s, v%d' % (s1, f2u(1.0 / 640), s1))
        e('v_mul_f32 v%d, %s, v%d' % (s2, f2u(1.0 / 640), s2))
        e('v_fma_f32 v%d, -v%d, v%d, v%d' % (s2, s1, s1, s2))
        e('v_max_f32 v%d, 0, v%d' % (s2, s2))
        e('v_cvt_pk_bf16_f32 v%d, 0, v%d' % (s2, s2))
        e('v_add_f32 v%d, %s, v%d' % (s2, f2u(1e-5), s2))
        e('v_cvt_pk_bf16_f32 v%d, 0, v%d' % (s2, s2))
        e('v_sqrt_f32 v%d, v%d' % (s2, s2))
        e('v_cvt_pk_bf16_f32 v%d, 0, v%d' % (s1, s1))
        e('v_cvt_pk_bf16_f32 v%d, 0, v%d' % (s2, s2))
        e('v_rcp_f32 v%d, v%d' % (s2, s2))

    e('s_cmp_ge_u32 s2, 0x100')
    e('s_cbranch_scc1 L_end')
    e('s_load_dwordx16 s[16:31], s[0:1], 0')
    e('s_load_dwordx8 s[32:39], s[0:1], 64')
    e('s_load_dwordx2 s[40:41], s[0:1], 96')
    e('v_and_b32 v1, 63, v0')
    e('v_lshrrev_b32 v3, 6, v0')
    e('v_readfirstlane_b32 s%d, v3' % sW)
    if P.get('xcdmap', 0):
        e('s_and_b32 s%d, s2, 7' % sH)
        e('s_lshl_b32 s%d, s%d, 2' % (sH, sH))
        e('s_bfe_u32 s%d, s2, 0x20003' % sS)
        e('s_add_u32 s%d, s%d, s%d' % (sH, sH, sS))
        e('s_lshr_b32 s%d, s2, 5' % sS)
    else:
        e('s_lshr_b32 s%d, s2, 3' % sH)
        e('s_and_b32 s%d, s2, 7' % sS)
    e('s_mul_i32 s%d, s2, 205' % sR)
    e('s_lshr_b32 s%d, s%d, 11' % (sR, sR))
    e('s_mul_i32 s%d, s%d, 10' % (sCB, sR))
    e('s_sub_u32 s%d, s2, s%d' % (sCB, sCB))
    for i in range(1, 8):
        e('s_mov_b32 s%d, %d' % (4 + i, 3072 * i))
    e('s_mul_i32 s%d, s%d, 6291456' % (sA, sH))
    e('s_mul_i32 s%d, s%d, 196608' % (sB, sS))
    e('s_add_u32 s%d, s%d, s%d' % (sA, sA, sB))
    e('s_add_u32 s%d, s%d, %d' % (sA, sA, 12288 * 384))
    e('s_mul_i32 s%d, s%d, %d' % (sB, sS, 80 * 12288))
    e('s_mul_i32 s%d, s%d, 384' % (sC, sH))
    e('s_add_u32 s%d, s%d, s%d' % (sB, sB, sC))
    for n in (SX, SK, SV, SWQ, SWO, SWS, SW1, SB1, SW2, SOUT, SB2):
        e('s_mov_b32 s%d, 0x00020000' % (n + 3))
    for n, sz in ((SX, 1280), (SK, 196608), (SV, 196608), (SWQ, 79 * 12288 + 384), (SWO, 255 * 1280 + 128),
                  (SWS, WS_SIZE), (SW1, 3072), (SB1, 3072), (SW2, 3072), (SOUT, 1280), (SB2, 2)):
        e('s_mov_b32 s%d, %d' % (n + 2, sz))
    e('s_waitcnt lgkmcnt(0)')
    e('s_load_dword s%d, s[40:41], 0' % sE)
    e('s_mov_b64 s[%d:%d], s[16:17]' % (SX, SX + 1))
    e('s_add_u32 s%d, s22, s%d' % (SWQ, sB))
    e('s_addc_u32 s%d, s23, 0' % (SWQ + 1))
    e('s_add_u32 s%d, s18, s%d' % (SK, sA))
    e('s_addc_u32 s%d, s19, 0' % (SK + 1))
    e('s_add_u32 s%d, s20, s%d' % (SV, sA))
    e('s_addc_u32 s%d, s21, 0' % (SV + 1))
    e('s_min_u32 s%d, s%d, 23' % (sA, sR))
    e('s_mul_i32 s%d, s%d, %d' % (sA, sA, 256 * 1280))
    e('s_lshl_b32 s%d, s%d, 7' % (sB, sCB))
    e('s_add_u32 s%d, s%d, s%d' % (sA, sA, sB))
    e('s_add_u32 s%d, s24, s%d' % (SWO, sA))
    e('s_addc_u32 s%d, s25, 0' % (SWO + 1))
    e('s_mov_b64 s[%d:%d], s[40:41]' % (SWS, SWS + 1))
    e('s_mov_b64 s[%d:%d], s[28:29]' % (SW1, SW1 + 1))
    e('s_mov_b64 s[%d:%d], s[30:31]' % (SB1, SB1 + 1))
    e('s_mov_b64 s[%d:%d], s[32:33]' % (SW2, SW2 + 1))
    e('s_mov_b64 s[%d:%d], s[36:37]' % (SOUT, SOUT + 1))
    e('s_mov_b64 s[%d:%d], s[34:35]' % (SB2, SB2 + 1))
    e('s_cmp_eq_u32 s%d, 8' % sW)
    e('s_cbranch_scc1 L_comm')

    stamp('start')
    XA = ACC
    e('v_lshlrev_b32 v4, 4, v1')
    e('v_lshlrev_b32 v5, 2, v1')
    e('buffer_load_dwordx4 %s, v4, %s, 0 offen' % (vr(XA, 4), srd(SX)), 'x')
    e('buffer_load_dword v%d, v5, %s, 0 offen offset:1024' % (XA + 4, srd(SX)), 'x')
    e('v_mul_u32_u24 v3, 2731, v0')
    e('v_lshrrev_b32 v3, 16, v3')
    e('v_mul_u32_u24 v4, 24, v3')
    e('v_sub_u32 v4, v0, v4')
    e('s_mul_i32 s%d, s%d, 160' % (sA, sS))
    e('v_lshlrev_b32 v6, 1, v3')
    for k in range(4):
        e('buffer_load_ushort v%d, v6, %s, s%d offen offset:%d' % (XA + 5 + k, srd(SX), sA, 40 * k), 'x')
    e('v_mul_u32_u24 v7, 12288, v3')
    e('v_lshl_add_u32 v7, v4, 4, v7')
    e('v_mov_b32 v5, 0x80000000')
    e('v_cmp_gt_u32 vcc, 480, v0')
    e('s_mov_b32 s%d, %d' % (sA, 245760))
    e('s_mov_b32 s%d, %d' % (sB, 2 * 245760))
    e('s_mov_b32 s%d, %d' % (sC, 3 * 245760))
    e('v_cndmask_b32 v7, v5, v7, vcc')
    for k, so in enumerate(('0', 's%d' % sA, 's%d' % sB, 's%d' % sC)):
        e('buffer_load_dwordx4 %s, v7, %s, %s offen%s' % (vr(WB + 4 * k, 4), srd(SWQ), so, NTW), 'wq%d' % k)
    e('v_lshrrev_b32 v2, 3, v1')
    e('v_mul_u32_u24 v2, 384, v2')
    e('v_and_b32 v3, 7, v1')
    e('v_lshl_add_u32 v2, v3, 4, v2')
    e('s_mul_i32 s%d, s%d, %d' % (sA, sW, 64 * 384))
    e('v_add_u32 v2, s%d, v2' % sA)

    def kvload(S, i, tag):
        so = 's%d' % (4 + i) if i else '0'
        for c in range(3):
            e('buffer_load_dwordx4 %s, v2, %s, %s offen offset:%d%s' % (vr(KV + 12 * i + 4 * c, 4), srd(S), so, 128 * c, NT),
              '%s%d' % (tag, i))

    for i in range(NPRE):
        kvload(SK, i, 'k')
    a.vwait('x')
    S1, S2 = ACC + 10, ACC + 11
    e('v_mov_b32 v3, 0x3f803f80')
    for k in range(5):
        e('v_dot2_f32_bf16 v%d, v%d, v3, %s' % (S1, XA + k, 'v%d' % S1 if k else '0'))
        e('v_dot2_f32_bf16 v%d, v%d, v%d, %s' % (S2, XA + k, XA + k, 'v%d' % S2 if k else '0'))
    for k in range(4):
        e('v_lshlrev_b32 v%d, 16, v%d' % (XA + 5 + k, XA + 5 + k))
    allred([S1, S2], 'v_add_f32', [1, 2, 4, 8, 16, 32], TMP)
    ln_stats(S1, S2, TMP)
    XL = SC
    for k in range(4):
        e('v_sub_f32 v%d, v%d, v%d' % (XA + 5 + k, XA + 5 + k, S1))
    for k in range(4):
        e('v_cvt_pk_bf16_f32 v%d, 0, v%d' % (XA + 5 + k, XA + 5 + k))
    for k in range(4):
        e('v_mul_f32 v%d, v%d, v%d' % (XA + 5 + k, XA + 5 + k, S2))
    for k in range(4):
        e('v_cvt_pk_bf16_f32 v%d, v%d, 0' % (XL + k, XA + 5 + k))
        e('v_cvt_pk_bf16_f32 v%d, 0, v%d' % (XL + 4 + k, XA + 5 + k))
    QA = ACC + 12
    for k in range(4):
        a.vwait('wq%d' % k)
        for j in range(4):
            e('v_dot2_f32_bf16 v%d, v%d, v%d, %s' % (QA + 2 * j, WB + 4 * k + j, XL + k, 'v%d' % (QA + 2 * j) if k else '0'))
            e('v_dot2_f32_bf16 v%d, v%d, v%d, %s' % (QA + 2 * j + 1, WB + 4 * k + j, XL + 4 + k, 'v%d' % (QA + 2 * j + 1) if k else '0'))
    e('v_lshlrev_b32 v3, 5, v0')
    e('ds_write_b128 v3, %s offset:%d' % (vr(QA, 4), L_QP))
    e('ds_write_b128 v3, %s offset:%d' % (vr(QA + 4, 4), L_QP + 16))
    e('s_waitcnt lgkmcnt(0)')
    e('s_barrier')
    stamp('B1')
    for i in range(NPRE, 8):
        kvload(SK, i, 'k')
    tags()
    e('v_and_b32 v3, 7, v1')
    e('v_lshlrev_b32 v3, 4, v3')
    stamp('Kissued')
    e('s_barrier')
    stamp('B2')
    for c in range(3):
        e('ds_read_b128 %s, v3 offset:%d' % (vr(QR + 4 * c, 4), L_QB + 128 * c))
    e('s_waitcnt lgkmcnt(0)')
    NVK = P.get('nvk', 8)
    for i in range(8):
        a.vwait('k%d' % i)
        for j in range(4):
            for c in range(3):
                d = SC + i if c == 0 else TMP + c
                e('v_dot2_f32_bf16 v%d, v%d, v%d, %s' % (d, KV + 12 * i + 4 * c + j, QR + 4 * c + j, 'v%d' % d if j else '0'))
        if i < NVK:
            kvload(SV, i, 'v')
        e('v_add_f32 v%d, v%d, v%d' % (SC + i, SC + i, TMP + 1))
        e('v_add_f32 v%d, v%d, v%d' % (SC + i, SC + i, TMP + 2))
    stamp('Kdone')
    allred(list(range(SC, SC + 8)), 'v_add_f32', [1, 2, 4], TMP)
    for i in range(8):
        e('v_cvt_pk_bf16_f32 v%d, 0, v%d' % (SC + i, SC + i))
    for i in range(8):
        e('v_mul_f32 v%d, %s, v%d' % (SC + i, f2u(192 ** -0.5), SC + i))
    for i in range(8):
        e('v_cvt_pk_bf16_f32 v%d, 0, v%d' % (SC + i, SC + i))
    e('v_max3_f32 v4, v%d, v%d, v%d' % (SC, SC + 1, SC + 2))
    e('v_max3_f32 v5, v%d, v%d, v%d' % (SC + 3, SC + 4, SC + 5))
    e('v_max3_f32 v4, v4, v%d, v%d' % (SC + 6, SC + 7))
    e('v_max_f32 v4, v4, v5')
    allred([4], 'v_max_f32', [8, 16, 32], TMP)
    for i in range(8):
        e('v_sub_f32 v%d, v%d, v4' % (SC + i, SC + i))
    for i in range(8):
        e('v_mul_f32 v%d, %s, v%d' % (SC + i, f2u(LOG2E), SC + i))
    for i in range(8):
        e('v_exp_f32 v%d, v%d' % (SC + i, SC + i))
    e('v_add_f32 v5, v%d, v%d' % (SC, SC + 1))
    for i in range(2, 8):
        e('v_add_f32 v5, v5, v%d' % (SC + i))
    allred([5], 'v_add_f32', [8, 16, 32], TMP)
    e('s_lshl_b32 s%d, s%d, 3' % (sA, sW))
    e('v_mov_b32 v3, s%d' % sA)
    e('ds_write_b64 v3, v[4:5] offset:%d' % L_ML)

    def woload():
        e('v_lshrrev_b32 v6, 3, v1')
        e('v_mul_u32_u24 v6, 5120, v6')
        e('v_and_b32 v7, 7, v1')
        e('v_lshl_add_u32 v6, v7, 4, v6')
        e('s_mul_i32 s%d, s%d, %d' % (sA, sW, 32 * 1280))
        e('s_cmp_ge_u32 s2, 240')
        e('s_cselect_b32 s%d, 0x40000000, s%d' % (sA, sA))
        e('v_add_u32 v6, s%d, v6' % sA)
        for k in range(4):
            e('buffer_load_dwordx4 %s, v6, %s, 0 offen offset:%d%s' % (vr(WB + 4 * k, 4), srd(SWO), 1280 * k, NTW), 'wo')
        e('v_lshlrev_b32 v7, 1, v0')
        for n, S in enumerate((SW1, SB1, SW2)):
            for k in range(3):
                e('buffer_load_ushort v%d, v7, %s, 0 offen offset:%d' % (QR + 3 * n + k, srd(S), 1024 * k), 'mw')

    WOAT = P.get('woat', 0)
    nissued = NVK
    for i in range(8):
        if nissued < 8:
            kvload(SV, nissued, 'v')
            nissued += 1
        if i == max(WOAT, 7 - NVK):
            woload()
        e('v_cvt_pk_bf16_f32 v%d, v%d, 0' % (TMP, SC + i))
        e('v_cvt_pk_bf16_f32 v%d, 0, v%d' % (TMP + 1, SC + i))
        a.vwait('v%d' % i)
        for n in range(12):
            for hh in range(2):
                d = ACC + 2 * n + hh
                e('v_dot2_f32_bf16 v%d, v%d, v%d, %s' % (d, KV + 12 * i + n, TMP + hh, 'v%d' % d if i else '0'))
    stamp('Vdone')
    for i in range(12):
        e('v_permlane32_swap_b32 v%d, v%d' % (ACC + i, ACC + 12 + i))
    for i in range(12):
        e('v_add_f32 v%d, v%d, v%d' % (ACC + i, ACC + i, ACC + 12 + i))
    for i in range(6):
        e('v_permlane16_swap_b32 v%d, v%d' % (ACC + i, ACC + 6 + i))
    for i in range(6):
        e('v_add_f32 v%d, v%d, v%d' % (ACC + i, ACC + i, ACC + 6 + i))
    e('v_and_b32 v3, 7, v1')
    e('v_mul_u32_u24 v3, 96, v3')
    e('v_lshrrev_b32 v4, 4, v1')
    e('v_mad_u32_u24 v3, v4, 24, v3')
    e('s_mul_i32 s%d, s%d, 768' % (sA, sW))
    e('v_add_u32 v3, s%d, v3' % sA)
    allred(list(range(ACC, ACC + 6)), 'v_add_f32', [8], TMP)
    for i in range(3):
        e('ds_write_b64 v3, %s offset:%d' % (vr(ACC + 2 * i, 2), L_OP + 8 * i))
    e('s_waitcnt lgkmcnt(0)')
    e('s_barrier')
    stamp('B3')
    e('s_cmp_ge_u32 s2, 240')
    e('s_cbranch_scc1 L_stream_end')
    e('s_lshl_b32 s%d, s%d, 3' % (sA, sR))
    e('s_add_u32 s%d, s%d, s%d' % (sA, sA, sW))
    e('s_mul_i32 s%d, s%d, 171' % (sB, sA))
    e('s_lshr_b32 s%d, s%d, 10' % (sB, sB))
    e('s_mul_i32 s%d, s%d, 6' % (sC, sB))
    e('s_sub_u32 s%d, s%d, s%d' % (sA, sA, sC))
    e('s_lshl_b32 s%d, s%d, 7' % (sA, sA))
    e('s_lshl_b32 s%d, s%d, 13' % (sB, sB))
    e('s_add_u32 s%d, s%d, %d' % (sB, sB, OX))
    e('s_add_u32 s%d, s%d, s%d' % (sA, sA, sB))
    e('v_and_b32 v3, 7, v1')
    e('v_lshlrev_b32 v3, 10, v3')
    e('v_lshrrev_b32 v4, 3, v1')
    e('v_lshl_add_u32 v4, v4, 4, v3')
    G0, G1, GT = KV, KV + 4, KV + 8
    poll('h1ml', ['buffer_load_dwordx4 %s, v3, %s, s%d offen offset:768 sc1' % (vr(G1, 4), srd(SWS), sB)], [G1], GT)
    e('v_and_b32 v%d, 0xffff0000, v%d' % (G1, G1))
    e('v_mov_b32 v5, v%d' % G1)
    allred([5], 'v_max_f32', [1, 2, 4], TMP)
    e('v_sub_f32 v5, v%d, v5' % G1)
    e('v_mul_f32 v5, %s, v5' % f2u(LOG2E))
    e('v_exp_f32 v5, v5')
    e('v_mul_f32 v6, v5, v%d' % (G1 + 1))
    allred([6], 'v_add_f32', [1, 2, 4], TMP)
    e('v_rcp_f32 v6, v6')
    e('v_mul_f32 v5, v5, v6')
    for n in range(9):
        e('v_lshlrev_b32 v%d, 16, v%d' % (QR + n, QR + n))
    poll('h1o', ['buffer_load_dwordx4 %s, v4, %s, s%d offen sc1' % (vr(G0, 4), srd(SWS), sA)], [G0], GT)
    stamp('h1')
    for k in range(4):
        e('v_mul_f32 v%d, v5, v%d' % (G0 + k, G0 + k))
    allred(list(range(G0, G0 + 4)), 'v_add_f32', [1, 2, 4], TMP)
    for k in range(4):
        e('v_cvt_pk_bf16_f32 v%d, v%d, 0' % (SC + k, G0 + k))
        e('v_cvt_pk_bf16_f32 v%d, 0, v%d' % (SC + 4 + k, G0 + k))
    for k in range(4):
        for j in range(4):
            e('v_dot2_f32_bf16 v%d, v%d, v%d, %s' % (ACC + 2 * j, WB + 4 * k + j, SC + k, 'v%d' % (ACC + 2 * j) if k else '0'))
            e('v_dot2_f32_bf16 v%d, v%d, v%d, %s' % (ACC + 2 * j + 1, WB + 4 * k + j, SC + 4 + k, 'v%d' % (ACC + 2 * j + 1) if k else '0'))
    e('v_and_b32 v3, 7, v1')
    e('v_lshlrev_b32 v3, 5, v3')
    e('v_lshrrev_b32 v4, 4, v1')
    e('v_lshl_add_u32 v3, v4, 3, v3')
    e('s_lshl_b32 s%d, s%d, 8' % (sA, sW))
    e('v_add_u32 v3, s%d, v3' % sA)
    for i in range(4):
        e('v_permlane32_swap_b32 v%d, v%d' % (ACC + i, ACC + 4 + i))
    for i in range(4):
        e('v_add_f32 v%d, v%d, v%d' % (ACC + i, ACC + i, ACC + 4 + i))
    for i in range(2):
        e('v_permlane16_swap_b32 v%d, v%d' % (ACC + i, ACC + 2 + i))
    for i in range(2):
        e('v_add_f32 v%d, v%d, v%d' % (ACC + i, ACC + i, ACC + 2 + i))
    allred([ACC, ACC + 1], 'v_add_f32', [8], TMP)
    e('ds_write_b64 v3, %s offset:%d' % (vr(ACC, 2), L_YP))
    e('s_waitcnt lgkmcnt(0)')
    e('s_barrier')
    stamp('B4')
    e('s_cmp_ge_u32 s2, 214')
    e('s_cbranch_scc1 L_stream_end')
    e('s_mul_i32 s%d, s2, 12' % sA)
    e('v_mov_b32 v3, s%d' % sA)
    K0 = -2.0 * 0.7978845608028654 * LOG2E
    e('v_mov_b32 v6, %s' % f2u(K0))
    e('s_mov_b32 s%d, %s' % (sB, f2u(K0 * 0.044715)))
    e('s_lshl_b32 s%d, s%d, 4' % (sA, sW))
    e('v_lshrrev_b32 v4, 4, v1')
    e('v_lshl_add_u32 v4, v4, 2, s%d' % sA)
    e('s_barrier')
    stamp('B5')
    for i in range(3):
        e('ds_read_b32 v%d, v3 offset:%d' % (SC + i, L_HN + 4 * i))
    e('s_waitcnt lgkmcnt(0)')
    U, Z = KV, KV + 12
    idx = [(i, k) for i in range(3) for k in range(3)]
    for n, (i, k) in enumerate(idx):
        e('v_fma_f32 v%d, v%d, v%d, v%d' % (U + n, SC + i, QR + k, QR + 3 + k))
    for n in range(9):
        e('v_mul_f32 v%d, v%d, v%d' % (Z + n, U + n, U + n))
    for n in range(9):
        e('v_fma_f32 v%d, v%d, s%d, v6' % (Z + n, Z + n, sB))
    for n in range(9):
        e('v_mul_f32 v%d, v%d, v%d' % (Z + n, Z + n, U + n))
    for n, (i, k) in enumerate(idx):
        e('v_exp_f32 v%d, v%d' % (Z + n, Z + n))
        e('v_mul_f32 v%d, v%d, v%d' % (U + n, U + n, QR + 6 + k))
    for n in range(9):
        e('v_add_f32 v%d, 1.0, v%d' % (Z + n, Z + n))
    for n in range(9):
        e('v_rcp_f32 v%d, v%d' % (Z + n, Z + n))
    e('v_mov_b32 v%d, 0' % (ACC + 3))
    for k in range(3):
        for i in range(3):
            n = 3 * i + k
            if k == 0:
                e('v_mul_f32 v%d, v%d, v%d' % (ACC + i, U + n, Z + n))
            else:
                e('v_fma_f32 v%d, v%d, v%d, v%d' % (ACC + i, U + n, Z + n, ACC + i))
    e('v_permlane32_swap_b32 v%d, v%d' % (ACC, ACC + 2))
    e('v_permlane32_swap_b32 v%d, v%d' % (ACC + 1, ACC + 3))
    e('v_add_f32 v%d, v%d, v%d' % (ACC, ACC, ACC + 2))
    e('v_add_f32 v%d, v%d, v%d' % (ACC + 1, ACC + 1, ACC + 3))
    e('v_permlane16_swap_b32 v%d, v%d' % (ACC, ACC + 1))
    e('v_add_f32 v%d, v%d, v%d' % (ACC, ACC, ACC + 1))
    allred([ACC], 'v_add_f32', [1, 2, 4, 8], TMP)
    e('ds_write_b32 v4, v%d offset:%d' % (ACC, L_RED))
    e('s_waitcnt lgkmcnt(0)')
    e('s_barrier')
    e('L_stream_end:')
    e('s_waitcnt vmcnt(0)')
    if STAMP:
        e('s_cmp_lg_u32 s%d, 0' % sW)
        e('s_cbranch_scc1 L_end')
        dump_stamps(1)
    e('s_endpgm')

    e('L_comm:')
    if P.get('padto', 0):
        e('s_memrealtime s[98:99]')
    a.vm = []
    stamps.clear()
    stamp('start')
    if P.get('prio', 1):
        e('s_setprio 3')
    VM = 2
    e('v_mov_b32 v%d, 0xfffff800' % VM)
    e('v_and_b32 v3, 15, v1')
    e('v_lshlrev_b32 v3, 2, v3')
    e('v_mov_b32 v4, 0')
    e('ds_write_b32 v3, v4 offset:%d' % L_ML)
    XO, B2R = 160, 162
    e('s_sub_u32 s%d, s2, 236' % sA)
    e('s_lshl_b32 s%d, s%d, 6' % (sA, sA))
    e('s_cmp_ge_u32 s2, 236')
    e('s_cselect_b32 s%d, s%d, 0' % (sA, sA))
    e('v_and_b32 v3, 7, v1')
    e('v_lshlrev_b32 v3, 3, v3')
    e('buffer_load_dwordx2 %s, v3, %s, s%d offen' % (vr(XO, 2), srd(SX), sA))
    e('buffer_load_ushort v%d, v4, %s, 0 offen' % (B2R, srd(SB2)))
    tags()
    e('v_lshlrev_b32 v3, 4, v1')
    e('s_mov_b32 exec_hi, 0xffff')
    e('s_lshl_b32 s%d, s%d, 3' % (sA, sH))
    e('s_mul_i32 s%d, s%d, 768' % (sB, sA))
    e('s_add_u32 s%d, s%d, %d' % (sB, sB, QX))
    e('s_add_u32 s%d, s%d, s%d' % (sA, sA, sS))
    e('s_lshl_b32 s97, s%d, 10' % sA)
    e('s_add_u32 s97, s97, %d' % OX)
    e('s_mul_i32 s%d, s%d, 768' % (sA, sA))
    e('s_add_u32 s%d, s%d, %d' % (sA, sA, QX))
    e('s_barrier')
    stamp('B1')
    R = 8
    for g in range(20):
        e('ds_read_b128 %s, v3 offset:%d' % (vr(R + 4 * g, 4), L_QP + 768 * g))
    e('s_waitcnt lgkmcnt(0)')
    n = 20
    while n > 1:
        hlf = n // 2
        for g in range(hlf):
            for k in (0, 2):
                e('v_pk_add_f32 %s, %s, %s' % (vr(R + 4 * g + k, 2), vr(R + 4 * g + k, 2), vr(R + 4 * (n - 1 - g) + k, 2)))
        n -= hlf
    tagins(R, VM)
    e('buffer_store_dwordx4 %s, v3, %s, s%d offen sc1' % (vr(R, 4), srd(SWS), sA))
    stamp('qpub')
    e('v_add_u32 v5, 3072, v3')
    G = 16
    poll('q', ['buffer_load_dwordx4 %s, v%d, %s, s%d offen offset:%d sc1' % (vr(G + 4 * s, 4), 3 if s < 4 else 5, srd(SWS), sB, 768 * (s % 4))
               for s in range(8)], [G + 4 * s for s in range(8)], 8)
    stamp('qgot')
    n = 8
    while n > 1:
        hlf = n // 2
        for g in range(hlf):
            for k in (0, 2):
                e('v_pk_add_f32 %s, %s, %s' % (vr(G + 4 * g + k, 2), vr(G + 4 * g + k, 2), vr(G + 4 * (n - 1 - g) + k, 2)))
        n -= hlf
    e('v_cvt_pk_bf16_f32 v%d, v%d, v%d' % (G, G, G + 1))
    e('v_cvt_pk_bf16_f32 v%d, v%d, v%d' % (G + 1, G + 2, G + 3))
    e('v_lshlrev_b32 v5, 3, v1')
    e('ds_write_b64 v5, %s offset:%d' % (vr(G, 2), L_QB))
    e('s_waitcnt lgkmcnt(0)')
    e('s_barrier')
    e('s_mov_b64 exec, -1')
    e('v_and_b32 v5, 7, v1')
    e('v_lshlrev_b32 v5, 3, v5')
    e('s_mov_b32 s%d, %d' % (sCNT, SPIN * 4))
    e('L_ml_poll:')
    e('ds_read_b64 v[8:9], v5 offset:%d' % L_ML)
    e('s_waitcnt lgkmcnt(0)')
    e('v_cmp_eq_u32 vcc, 0, v9')
    e('s_cbranch_vccz L_ml_ok')
    e('s_sleep 4')
    e('s_sub_u32 s%d, s%d, 1' % (sCNT, sCNT))
    e('s_cmp_lg_u32 s%d, 0' % sCNT)
    e('s_cbranch_scc1 L_ml_poll')
    e('L_ml_ok:')
    stamp('ml')
    e('v_mov_b32 v12, v8')
    allred([12], 'v_max_f32', [1, 2, 4], TMP)
    e('v_sub_f32 v10, v8, v12')
    e('v_mul_f32 v10, %s, v10' % f2u(LOG2E))
    e('v_exp_f32 v10, v10')
    e('v_mul_f32 v13, v10, v9')
    allred([13], 'v_add_f32', [1, 2, 4], TMP)
    e('v_mov_b32 v14, 0')
    e('v_mov_b32 v15, 0')
    tagins(12, VM)
    e('s_mov_b64 exec, 1')
    e('buffer_store_dwordx4 v[12:15], v3, %s, s97 offen offset:768 sc1' % srd(SWS))
    e('s_mov_b64 exec, -1')
    FW = 4
    for w in range(8):
        e('v_readlane_b32 s%d, v10, %d' % (FW + w, w))
    e('v_mul_u32_u24 v5, 43, v1')
    e('v_lshrrev_b32 v5, 8, v5')
    e('v_mul_u32_u24 v6, 6, v5')
    e('v_sub_u32 v6, v1, v6')
    e('v_lshlrev_b32 v5, 5, v5')
    e('v_and_b32 v7, 1, v6')
    e('v_lshl_add_u32 v5, v7, 4, v5')
    e('v_lshrrev_b32 v6, 1, v6')
    e('v_lshl_add_u32 v5, v6, 8, v5')
    e('s_mov_b32 exec_hi, 0xffff')
    e('s_barrier')
    stamp('B3')
    for w in range(8):
        e('ds_read_b128 %s, v3 offset:%d' % (vr(G + 4 * w, 4), L_OP + 768 * w))
    e('s_waitcnt lgkmcnt(0)')
    for w in range(8):
        base = 8 if w < 4 else 12
        for k in range(4):
            if w % 4 == 0:
                e('v_mul_f32 v%d, s%d, v%d' % (base + k, FW + w, G + 4 * w + k))
            else:
                e('v_fmac_f32 v%d, s%d, v%d' % (base + k, FW + w, G + 4 * w + k))
    for k in range(4):
        e('v_add_f32 v%d, v%d, v%d' % (8 + k, 8 + k, 12 + k))
    tagins(8, VM)
    e('buffer_store_dwordx4 v[8:11], v5, %s, s97 offen sc1' % srd(SWS))
    stamp('opub')
    e('s_cmp_ge_u32 s2, 240')
    e('s_cbranch_scc1 L_owner')
    e('s_mov_b64 exec, 0xffff')
    e('s_mul_i32 s%d, s%d, 24' % (sA, sCB))
    e('s_add_u32 s%d, s%d, s%d' % (sA, sA, sR))
    e('s_lshl_b32 s%d, s%d, 8' % (sA, sA))
    e('s_add_u32 s%d, s%d, %d' % (sA, sA, YX))
    e('s_barrier')
    for w in range(8):
        e('ds_read_b128 %s, v3 offset:%d' % (vr(G + 4 * w, 4), L_YP + 256 * w))
    e('s_waitcnt lgkmcnt(0)')
    n = 8
    while n > 1:
        hlf = n // 2
        for g in range(hlf):
            for k in (0, 2):
                e('v_pk_add_f32 %s, %s, %s' % (vr(G + 4 * g + k, 2), vr(G + 4 * g + k, 2), vr(G + 4 * (n - 1 - g) + k, 2)))
        n -= hlf
    tagins(G, VM)
    e('buffer_store_dwordx4 %s, v3, %s, s%d offen sc1' % (vr(G, 4), srd(SWS), sA))
    stamp('ypub')
    e('s_cmp_lt_u32 s2, 214')
    e('s_cbranch_scc1 L_final')
    e('s_cmp_lt_u32 s2, 236')
    e('s_cbranch_scc1 L_comm_end')
    e('L_owner:')
    e('s_mov_b64 exec, -1')
    e('s_sub_u32 s%d, s2, 236' % sA)
    e('s_lshr_b32 s%d, s%d, 1' % (sB, sA))
    e('s_mul_i32 s%d, s%d, %d' % (sB, sB, 24 * 256))
    e('s_and_b32 s%d, s%d, 1' % (sC, sA))
    e('s_lshl_b32 s%d, s%d, 7' % (sC, sC))
    e('s_add_u32 s%d, s%d, s%d' % (sB, sB, sC))
    e('s_add_u32 s%d, s%d, %d' % (sB, sB, YX))
    e('s_lshl_b32 s%d, s%d, 7' % (sA, sA))
    e('s_add_u32 s%d, s%d, %d' % (sA, sA, HX))
    e('v_lshrrev_b32 v5, 3, v1')
    e('v_lshlrev_b32 v5, 8, v5')
    e('v_and_b32 v6, 7, v1')
    e('v_lshl_add_u32 v5, v6, 4, v5')
    e('v_add_u32 v6, 4096, v5')
    G = 24
    poll('y', ['buffer_load_dwordx4 %s, v5, %s, s%d offen sc1' % (vr(G, 4), srd(SWS), sB),
               'buffer_load_dwordx4 %s, v5, %s, s%d offen offset:2048 sc1' % (vr(G + 4, 4), srd(SWS), sB),
               'buffer_load_dwordx4 %s, v6, %s, s%d offen sc1' % (vr(G + 8, 4), srd(SWS), sB)], [G, G + 4, G + 8], 8)
    st_owner = len(stamps)
    stamp('ygot')
    for k in range(4):
        e('v_add_f32 v%d, v%d, v%d' % (G + k, G + k, G + 4 + k))
    for k in range(4):
        e('v_add_f32 v%d, v%d, v%d' % (G + k, G + k, G + 8 + k))
    allred(list(range(G, G + 4)), 'v_add_f32', [8, 16, 32], 8)
    e('v_lshlrev_b32 v8, 16, v%d' % XO)
    e('v_and_b32 v9, 0xffff0000, v%d' % XO)
    e('v_lshlrev_b32 v10, 16, v%d' % (XO + 1))
    e('v_and_b32 v11, 0xffff0000, v%d' % (XO + 1))
    for k in range(4):
        e('v_cvt_pk_bf16_f32 v%d, 0, v%d' % (G + k, G + k))
    for k in range(4):
        e('v_add_f32 v%d, v%d, v%d' % (G + k, G + k, 8 + k))
    for k in range(4):
        e('v_cvt_pk_bf16_f32 v%d, 0, v%d' % (G + k, G + k))
    for k in range(4):
        e('v_or_b32 v%d, s%d, v%d' % (G + k, T0 + k, G + k))
    e('s_mov_b64 exec, 0xff')
    e('buffer_store_dwordx4 %s, v3, %s, s%d offen sc1' % (vr(G, 4), srd(SWS), sA))
    stamp('hpub')
    e('s_branch L_comm_end')
    e('L_final:')
    del stamps[st_owner:]
    e('s_mov_b64 exec, -1')
    e('v_and_b32 v5, 31, v1')
    e('v_lshlrev_b32 v5, 4, v5')
    e('s_mov_b32 s%d, %d' % (sA, HX))
    G = 24
    poll('h', ['buffer_load_dwordx4 %s, v3, %s, s%d offen sc1' % (vr(G, 4), srd(SWS), sA),
               'buffer_load_dwordx4 %s, v3, %s, s%d offen offset:1024 sc1' % (vr(G + 4, 4), srd(SWS), sA),
               'buffer_load_dwordx4 %s, v5, %s, s%d offen offset:2048 sc1' % (vr(G + 8, 4), srd(SWS), sA)], [G, G + 4, G + 8], 8)
    stamp('hgot')
    for k in range(12):
        e('v_and_b32 v%d, 0xffff0000, v%d' % (G + k, G + k))
    for k in range(3):
        e('ds_write_b128 v%d, %s offset:%d' % (3 if k < 2 else 5, vr(G + 4 * k, 4), L_H + 1024 * k))
    src = G
    for rnd in range(2):
        e('v_add_f32 v8, v%d, v%d' % (src + 8, src + 9))
        e('v_mul_f32 v9, v%d, v%d' % (src + 8, src + 8))
        e('v_add_f32 v10, v%d, v%d' % (src, src + 1))
        e('v_mul_f32 v11, v%d, v%d' % (src, src))
        e('v_add_f32 v8, v8, v%d' % (src + 10))
        e('v_fmac_f32 v9, v%d, v%d' % (src + 9, src + 9))
        e('v_add_f32 v8, v8, v%d' % (src + 11))
        e('v_fmac_f32 v9, v%d, v%d' % (src + 10, src + 10))
        e('v_fmac_f32 v11, v%d, v%d' % (src + 1, src + 1))
        e('v_fmac_f32 v9, v%d, v%d' % (src + 11, src + 11))
        for k in range(2, 8):
            e('v_add_f32 v10, v10, v%d' % (src + k))
            e('v_fmac_f32 v11, v%d, v%d' % (src + k, src + k))
        e('v_fma_f32 v8, v8, 0.5, v10')
        e('v_fma_f32 v9, v9, 0.5, v11')
        allred([8, 9], 'v_add_f32', [1, 2, 4, 8, 16, 32], 10)
        ln_stats(8, 9, 10)
        dst = 40
        for k in range(12):
            e('v_sub_f32 v%d, v%d, v8' % (dst + k, src + k))
        for k in range(12):
            e('v_cvt_pk_bf16_f32 v%d, 0, v%d' % (dst + k, dst + k))
        for k in range(12):
            e('v_mul_f32 v%d, v%d, v9' % (dst + k, dst + k))
        for k in range(12):
            e('v_cvt_pk_bf16_f32 v%d, 0, v%d' % (dst + k, dst + k))
        src = dst
    for k in range(3):
        e('ds_write_b128 v%d, %s offset:%d' % (3 if k < 2 else 5, vr(src + 4 * k, 4), L_HN + 1024 * k))
    e('s_waitcnt lgkmcnt(0)')
    e('s_barrier')
    stamp('B5')
    e('s_cmp_lg_u32 s2, 0')
    e('s_cbranch_scc1 L_noep')
    e('s_add_u32 s%d, s%d, 1' % (sA, sE))
    e('v_mov_b32 v8, s%d' % sA)
    e('s_mov_b64 exec, 1')
    e('buffer_store_dword v8, v3, %s, 0 offen' % srd(SWS))
    e('L_noep:')
    e('s_mov_b64 exec, 7')
    e('s_mul_i32 s%d, s2, 3' % sA)
    e('v_add_u32 v6, s%d, v1' % sA)
    e('v_lshlrev_b32 v7, 2, v6')
    e('ds_read_b32 v20, v7 offset:%d' % L_H)
    e('v_lshlrev_b32 v6, 1, v6')
    e('v_lshlrev_b32 v5, 2, v1')
    e('v_lshlrev_b32 v%d, 16, v%d' % (B2R, B2R))
    e('s_barrier')
    for w in range(0, 8, 2):
        e('ds_read_b32 v%d, v5 offset:%d' % (8 + w, L_RED + 16 * w))
        e('ds_read_b32 v%d, v5 offset:%d' % (9 + w, L_RED + 16 * w + 16))
    e('s_waitcnt lgkmcnt(0)')
    for k in range(4):
        e('v_add_f32 v%d, v%d, v%d' % (8 + k, 8 + k, 12 + k))
    e('v_add_f32 v8, v8, v10')
    e('v_add_f32 v9, v9, v11')
    e('v_add_f32 v8, v8, v9')
    e('v_cvt_pk_bf16_f32 v8, 0, v8')
    e('v_add_f32 v8, v8, v%d' % B2R)
    e('v_cvt_pk_bf16_f32 v8, 0, v8')
    e('v_add_f32 v8, v8, v20')
    e('v_cvt_pk_bf16_f32 v8, v8, 0')
    e('buffer_store_short v8, v6, %s, 0 offen' % srd(SOUT))
    stamp('out')
    e('L_comm_end:')
    if P.get('padto', 0):
        e('s_mov_b32 s%d, 100000' % sCNT)
        e('L_pad:')
        e('s_memrealtime s[100:101]')
        e('s_waitcnt lgkmcnt(0)')
        e('s_sub_u32 s100, s100, s98')
        e('s_cmp_ge_u32 s100, %d' % P['padto'])
        e('s_cbranch_scc1 L_pad_ok')
        e('s_sub_u32 s%d, s%d, 1' % (sCNT, sCNT))
        e('s_cmp_lg_u32 s%d, 0' % sCNT)
        e('s_cbranch_scc1 L_pad')
        e('L_pad_ok:')
    dump_stamps(0)
    e('L_end:')
    e('s_endpgm')

    ref = open('cdna_kernels/%s.s.ref' % NAME).read().split('\n')
    head = [l for l in ref if l.startswith(';') and '@launch grid' not in l]
    out = '\n'.join(head) + '\n'
    for sl in sorted(stampnames):
        out += '; stamps %d: %s\n' % (sl, ' '.join(stampnames[sl]))
    out += '; @launch grid=(256,1,1) block=(576,1,1) lds=%d\n' % LDS_SIZE
    out += '.amdgcn_target "amdgcn-amd-amdhsa--gfx950"\n.text\n.globl %s_kernel\n.p2align 8\n.type %s_kernel,@function\n%s_kernel:\n' % (NAME, NAME, NAME)
    out += a.text()
    out += '''.section .rodata,"a"
.p2align 6
.amdhsa_kernel %s_kernel
  .amdhsa_next_free_vgpr %d
  .amdhsa_next_free_sgpr 102
  .amdhsa_accum_offset %d
  .amdhsa_group_segment_fixed_size 0
  .amdhsa_kernarg_size 104
  .amdhsa_user_sgpr_count 2
  .amdhsa_user_sgpr_kernarg_segment_ptr 1
  .amdhsa_system_sgpr_workgroup_id_x 1
.end_amdhsa_kernel
''' % (NAME, NV, NV)
    return out


if __name__ == '__main__':
    P = {}
    outp = 'cdna_kernels/%s.s' % NAME
    for arg in sys.argv[1:]:
        k, v = arg.split('=')
        if k == 'out':
            outp = v
        else:
            P[k] = int(v, 0)
    for x in range(192):
        assert (x * 171) >> 10 == x // 6
    for x in range(256):
        assert (x * 205) >> 11 == x // 10
    for x in range(512):
        assert (x * 2731) >> 16 == x // 24
    for x in range(48):
        assert (x * 43) >> 8 == x // 6
    open(outp, 'w').write(gen(P))
```

```python
import sys, struct, os
sys.path.insert(0, os.path.dirname(os.path.abspath(__file__)))
from asmlib import Asm

NAME = 'sequential_preLN__sliding_block_cached__mixer_token_mlp__decode'


def f2u(x):
    return '0x%08x' % struct.unpack('<I', struct.pack('<f', x))[0]


LOG2E = 1.4426950408889634
QX, OX, YX, HX, TS = 0x1000, 0x50000, 0xA0000, 0xB0000, 0xC0000
WS_SIZE = 0x100000
L_QP = 0
L_QB = 16896
L_ML = 17408
L_OP = 17920
L_YP = 24064
L_HN = 26112
L_H = 28928
L_RED = 31744
LDS_SIZE = 32768
sW, sH, sS = 3, 12, 13
SX, SK, SV, SWQ, SWO, SWS, SW1, SB1, SW2, SOUT, SB2 = 44, 48, 52, 56, 60, 64, 68, 72, 76, 80, 84
T0, sE = 88, 92
sCNT, sA, sB, sC = 93, 94, 95, 96
sR, sCB = 14, 15
KV, WB, QR, ACC, SC = 8, 104, 120, 132, 156
TMP = 164
NV = 168
DP = 'row_mask:0xf bank_mask:0xf'


def srd(n):
    return 's[%d:%d]' % (n, n + 3)


def vr(a, n):
    return 'v[%d:%d]' % (a, a + n - 1) if n > 1 else 'v%d' % a


def gen(P):
    a = Asm()
    e = a.e
    NT = ' nt' if P.get('nt', 1) else ''
    NTW = ' nt' if P.get('ntw', 1) else ''
    NPRE = P.get('npre', 2)
    SPIN = P.get('spin', 1 << 20)
    STAMP = P.get('stamp', 0)
    SLP = P.get('sleep', 1)
    stamps = []
    stampnames = {}

    def stamp(name):
        if STAMP:
            r = 16 + 2 * len(stamps)
            assert r <= 40
            e('s_memrealtime s[%d:%d]' % (r, r + 1))
            stamps.append(name)

    def dump_stamps(slot):
        if not STAMP:
            return
        e('s_waitcnt lgkmcnt(0)')
        e('s_mov_b64 exec, -1')
        e('v_mov_b32 v4, 0')
        for i in range(len(stamps)):
            e('v_writelane_b32 v4, s%d, %d' % (16 + 2 * i, i))
        if STAMP == 2:
            stampnames[slot] = list(stamps)
            if slot == 1:
                return
            e('s_cmp_ge_u32 s2, 214')
            e('s_cbranch_scc1 L_end')
            e('s_not_b32 s16, s16')
            e('v_writelane_b32 v4, s16, 15')
            e('s_load_dwordx2 s[%d:%d], s[0:1], 88' % (SX, SX + 1))
            e('s_mov_b32 s%d, 64' % (SX + 2))
            e('v_lshlrev_b32 v5, 2, v1')
            e('s_mov_b64 exec, 0xffff')
            e('s_waitcnt lgkmcnt(0)')
            e('buffer_atomic_umax v4, v5, %s, 0 offen sc1' % srd(SX))
            return
        e('s_lshl_b32 s%d, s2, 7' % sA)
        e('s_add_u32 s%d, s%d, %d' % (sA, sA, TS + slot * 64))
        e('v_lshlrev_b32 v5, 2, v1')
        e('s_mov_b64 exec, 0xffff')
        e('buffer_store_dword v4, v5, %s, s%d offen' % (srd(SWS), sA))
        stampnames[slot] = list(stamps)

    def allred(regs, op, steps, tmp):
        for st in steps:
            if st in (1, 2, 4, 8):
                ctl = {1: 'quad_perm:[1,0,3,2]', 2: 'quad_perm:[2,3,0,1]', 4: 'row_half_mirror', 8: 'row_ror:8'}[st]
                for r in regs:
                    e('%s_dpp v%d, v%d, v%d %s %s' % (op, r, r, r, ctl, DP))
            else:
                for i, r in enumerate(regs):
                    e('v_mov_b32 v%d, v%d' % (tmp + i, r))
                for i, r in enumerate(regs):
                    e('v_permlane%d_swap_b32 v%d, v%d' % (st, r, tmp + i))
                for i, r in enumerate(regs):
                    e('%s v%d, v%d, v%d' % (op, r, r, tmp + i))

    def tagins(r, vmask):
        for k in range(4):
            e('v_and_or_b32 v%d, v%d, v%d, s%d' % (r + k, r + k, vmask, T0 + k))

    def tagchk(rs, t):
        for n, r in enumerate(rs):
            for k in range(4):
                e('v_xor_b32 v%d, s%d, v%d' % (t + 1 + k if n else t + k, T0 + k, r + k))
            if n == 0:
                e('v_or3_b32 v%d, v%d, v%d, v%d' % (t, t, t + 1, t + 2))
                e('v_or_b32 v%d, v%d, v%d' % (t, t, t + 3))
            else:
                e('v_or3_b32 v%d, v%d, v%d, v%d' % (t, t, t + 1, t + 2))
                e('v_or3_b32 v%d, v%d, v%d, v%d' % (t, t, t + 3, t + 4))
        e('v_and_b32 v%d, 0x7ff, v%d' % (t, t))
        e('v_cmp_ne_u32 vcc, 0, v%d' % t)

    def poll(name, loads, rs, t, sleep=SLP):
        e('s_mov_b32 s%d, %d' % (sCNT, SPIN))
        e('%s_poll:' % name)
        for l in loads:
            e(l)
        a.vwait0()
        tagchk(rs, t)
        e('s_cbranch_vccz %s_ok' % name)
        if sleep:
            e('s_sleep %d' % sleep)
        e('s_sub_u32 s%d, s%d, 1' % (sCNT, sCNT))
        e('s_cmp_lg_u32 s%d, 0' % sCNT)
        e('s_cbranch_scc1 %s_poll' % name)
        e('%s_ok:' % name)

    def tags():
        e('s_waitcnt lgkmcnt(0)')
        e('s_and_b32 s%d, s%d, 0x7ff' % (T0, sE))
        e('s_xor_b32 s%d, s%d, 0x2a5' % (T0 + 1, T0))
        e('s_lshr_b32 s%d, s%d, 11' % (T0 + 2, sE))
        e('s_and_b32 s%d, s%d, 0x7ff' % (T0 + 2, T0 + 2))
        e('s_lshr_b32 s%d, s%d, 22' % (T0 + 3, sE))
        e('s_xor_b32 s%d, s%d, 0x4d3' % (T0 + 3, T0 + 3))

    def ln_stats(s1, s2, t):
        e('v_mul_f32 v%d, %s, v%d' % (s1, f2u(1.0 / 640), s1))
        e('v_mul_f32 v%d, %s, v%d' % (s2, f2u(1.0 / 640), s2))
        e('v_fma_f32 v%d, -v%d, v%d, v%d' % (s2, s1, s1, s2))
        e('v_max_f32 v%d, 0, v%d' % (s2, s2))
        e('v_cvt_pk_bf16_f32 v%d, 0, v%d' % (s2, s2))
        e('v_add_f32 v%d, %s, v%d' % (s2, f2u(1e-5), s2))
        e('v_cvt_pk_bf16_f32 v%d, 0, v%d' % (s2, s2))
        e('v_sqrt_f32 v%d, v%d' % (s2, s2))
        e('v_cvt_pk_bf16_f32 v%d, 0, v%d' % (s1, s1))
        e('v_cvt_pk_bf16_f32 v%d, 0, v%d' % (s2, s2))
        e('v_rcp_f32 v%d, v%d' % (s2, s2))

    if P.get('padentry', 0):
        e('s_memrealtime s[98:99]')
    e('s_cmp_ge_u32 s2, 0x100')
    e('s_cbranch_scc1 L_end')
    e('s_load_dwordx16 s[16:31], s[0:1], 0')
    e('s_load_dwordx8 s[32:39], s[0:1], 64')
    e('s_load_dwordx2 s[40:41], s[0:1], 96')
    e('v_and_b32 v1, 63, v0')
    e('v_lshrrev_b32 v3, 6, v0')
    e('v_readfirstlane_b32 s%d, v3' % sW)
    if P.get('xcdmap', 0):
        e('s_and_b32 s%d, s2, 7' % sH)
        e('s_lshl_b32 s%d, s%d, 2' % (sH, sH))
        e('s_bfe_u32 s%d, s2, 0x20003' % sS)
        e('s_add_u32 s%d, s%d, s%d' % (sH, sH, sS))
        e('s_lshr_b32 s%d, s2, 5' % sS)
    else:
        e('s_lshr_b32 s%d, s2, 3' % sH)
        e('s_and_b32 s%d, s2, 7' % sS)
    e('s_mul_i32 s%d, s2, 205' % sR)
    e('s_lshr_b32 s%d, s%d, 11' % (sR, sR))
    e('s_mul_i32 s%d, s%d, 10' % (sCB, sR))
    e('s_sub_u32 s%d, s2, s%d' % (sCB, sCB))
    for i in range(1, 8):
        e('s_mov_b32 s%d, %d' % (4 + i, 3072 * i))
    e('s_mul_i32 s%d, s%d, 6291456' % (sA, sH))
    e('s_mul_i32 s%d, s%d, 196608' % (sB, sS))
    e('s_add_u32 s%d, s%d, s%d' % (sA, sA, sB))
    e('s_add_u32 s%d, s%d, %d' % (sA, sA, 12288 * 384))
    e('s_mul_i32 s%d, s%d, %d' % (sB, sS, 80 * 12288))
    e('s_mul_i32 s%d, s%d, 384' % (sC, sH))
    e('s_add_u32 s%d, s%d, s%d' % (sB, sB, sC))
    for n in (SX, SK, SV, SWQ, SWO, SWS, SW1, SB1, SW2, SOUT, SB2):
        e('s_mov_b32 s%d, 0x00020000' % (n + 3))
    for n, sz in ((SX, 1280), (SK, 196608), (SV, 196608), (SWQ, 79 * 12288 + 384), (SWO, 255 * 1280 + 128),
                  (SWS, WS_SIZE), (SW1, 3072), (SB1, 3072), (SW2, 3072), (SOUT, 1280), (SB2, 2)):
        e('s_mov_b32 s%d, %d' % (n + 2, sz))
    e('s_waitcnt lgkmcnt(0)')
    e('s_load_dword s%d, s[40:41], 0' % sE)
    e('s_mov_b64 s[%d:%d], s[16:17]' % (SX, SX + 1))
    e('s_add_u32 s%d, s22, s%d' % (SWQ, sB))
    e('s_addc_u32 s%d, s23, 0' % (SWQ + 1))
    e('s_add_u32 s%d, s18, s%d' % (SK, sA))
    e('s_addc_u32 s%d, s19, 0' % (SK + 1))
    e('s_add_u32 s%d, s20, s%d' % (SV, sA))
    e('s_addc_u32 s%d, s21, 0' % (SV + 1))
    e('s_min_u32 s%d, s%d, 23' % (sA, sR))
    e('s_mul_i32 s%d, s%d, %d' % (sA, sA, 256 * 1280))
    e('s_lshl_b32 s%d, s%d, 7' % (sB, sCB))
    e('s_add_u32 s%d, s%d, s%d' % (sA, sA, sB))
    e('s_add_u32 s%d, s24, s%d' % (SWO, sA))
    e('s_addc_u32 s%d, s25, 0' % (SWO + 1))
    e('s_mov_b64 s[%d:%d], s[40:41]' % (SWS, SWS + 1))
    e('s_mov_b64 s[%d:%d], s[28:29]' % (SW1, SW1 + 1))
    e('s_mov_b64 s[%d:%d], s[30:31]' % (SB1, SB1 + 1))
    e('s_mov_b64 s[%d:%d], s[32:33]' % (SW2, SW2 + 1))
    e('s_mov_b64 s[%d:%d], s[36:37]' % (SOUT, SOUT + 1))
    e('s_mov_b64 s[%d:%d], s[34:35]' % (SB2, SB2 + 1))
    e('s_cmp_eq_u32 s%d, 8' % sW)
    e('s_cbranch_scc1 L_comm')

    stamp('start')
    XA = ACC
    e('v_lshlrev_b32 v4, 4, v1')
    e('v_lshlrev_b32 v5, 2, v1')
    e('buffer_load_dwordx4 %s, v4, %s, 0 offen' % (vr(XA, 4), srd(SX)), 'x')
    e('buffer_load_dword v%d, v5, %s, 0 offen offset:1024' % (XA + 4, srd(SX)), 'x')
    e('v_mul_u32_u24 v3, 2731, v0')
    e('v_lshrrev_b32 v3, 16, v3')
    e('v_mul_u32_u24 v4, 24, v3')
    e('v_sub_u32 v4, v0, v4')
    e('s_mul_i32 s%d, s%d, 160' % (sA, sS))
    e('v_lshlrev_b32 v6, 1, v3')
    for k in range(4):
        e('buffer_load_ushort v%d, v6, %s, s%d offen offset:%d' % (XA + 5 + k, srd(SX), sA, 40 * k), 'x')
    e('v_mul_u32_u24 v7, 12288, v3')
    e('v_lshl_add_u32 v7, v4, 4, v7')
    e('v_mov_b32 v5, 0x80000000')
    e('v_cmp_gt_u32 vcc, 480, v0')
    e('s_mov_b32 s%d, %d' % (sA, 245760))
    e('s_mov_b32 s%d, %d' % (sB, 2 * 245760))
    e('s_mov_b32 s%d, %d' % (sC, 3 * 245760))
    e('v_cndmask_b32 v7, v5, v7, vcc')
    for k, so in enumerate(('0', 's%d' % sA, 's%d' % sB, 's%d' % sC)):
        e('buffer_load_dwordx4 %s, v7, %s, %s offen%s' % (vr(WB + 4 * k, 4), srd(SWQ), so, NTW), 'wq%d' % k)
    e('v_lshrrev_b32 v2, 3, v1')
    e('v_mul_u32_u24 v2, 384, v2')
    e('v_and_b32 v3, 7, v1')
    e('v_lshl_add_u32 v2, v3, 4, v2')
    e('s_mul_i32 s%d, s%d, %d' % (sA, sW, 64 * 384))
    e('v_add_u32 v2, s%d, v2' % sA)

    def kvload(S, i, tag):
        so = 's%d' % (4 + i) if i else '0'
        for c in range(3):
            e('buffer_load_dwordx4 %s, v2, %s, %s offen offset:%d%s' % (vr(KV + 12 * i + 4 * c, 4), srd(S), so, 128 * c, NT),
              '%s%d' % (tag, i))

    for i in range(NPRE):
        kvload(SK, i, 'k')
    a.vwait('x')
    S1, S2 = ACC + 10, ACC + 11
    e('v_mov_b32 v3, 0x3f803f80')
    for k in range(5):
        e('v_dot2_f32_bf16 v%d, v%d, v3, %s' % (S1, XA + k, 'v%d' % S1 if k else '0'))
        e('v_dot2_f32_bf16 v%d, v%d, v%d, %s' % (S2, XA + k, XA + k, 'v%d' % S2 if k else '0'))
    for k in range(4):
        e('v_lshlrev_b32 v%d, 16, v%d' % (XA + 5 + k, XA + 5 + k))
    allred([S1, S2], 'v_add_f32', [1, 2, 4, 8, 16, 32], TMP)
    ln_stats(S1, S2, TMP)
    XL = SC
    for k in range(4):
        e('v_sub_f32 v%d, v%d, v%d' % (XA + 5 + k, XA + 5 + k, S1))
    for k in range(4):
        e('v_cvt_pk_bf16_f32 v%d, 0, v%d' % (XA + 5 + k, XA + 5 + k))
    for k in range(4):
        e('v_mul_f32 v%d, v%d, v%d' % (XA + 5 + k, XA + 5 + k, S2))
    for k in range(4):
        e('v_cvt_pk_bf16_f32 v%d, v%d, 0' % (XL + k, XA + 5 + k))
        e('v_cvt_pk_bf16_f32 v%d, 0, v%d' % (XL + 4 + k, XA + 5 + k))
    QA = ACC + 12
    for k in range(4):
        a.vwait('wq%d' % k)
        for j in range(4):
            e('v_dot2_f32_bf16 v%d, v%d, v%d, %s' % (QA + 2 * j, WB + 4 * k + j, XL + k, 'v%d' % (QA + 2 * j) if k else '0'))
            e('v_dot2_f32_bf16 v%d, v%d, v%d, %s' % (QA + 2 * j + 1, WB + 4 * k + j, XL + 4 + k, 'v%d' % (QA + 2 * j + 1) if k else '0'))
    e('v_lshlrev_b32 v3, 5, v0')
    e('ds_write_b128 v3, %s offset:%d' % (vr(QA, 4), L_QP))
    e('ds_write_b128 v3, %s offset:%d' % (vr(QA + 4, 4), L_QP + 16))
    e('s_waitcnt lgkmcnt(0)')
    e('s_barrier')
    stamp('B1')
    for i in range(NPRE, 8):
        kvload(SK, i, 'k')
    tags()
    e('v_and_b32 v3, 7, v1')
    e('v_lshlrev_b32 v3, 4, v3')
    stamp('Kissued')
    e('s_barrier')
    stamp('B2')
    for c in range(3):
        e('ds_read_b128 %s, v3 offset:%d' % (vr(QR + 4 * c, 4), L_QB + 128 * c))
    e('s_waitcnt lgkmcnt(0)')
    NVK = P.get('nvk', 8)
    for i in range(8):
        a.vwait('k%d' % i)
        for j in range(4):
            for c in range(3):
                d = SC + i if c == 0 else TMP + c
                e('v_dot2_f32_bf16 v%d, v%d, v%d, %s' % (d, KV + 12 * i + 4 * c + j, QR + 4 * c + j, 'v%d' % d if j else '0'))
        if i < NVK:
            kvload(SV, i, 'v')
        e('v_add_f32 v%d, v%d, v%d' % (SC + i, SC + i, TMP + 1))
        e('v_add_f32 v%d, v%d, v%d' % (SC + i, SC + i, TMP + 2))
    stamp('Kdone')
    allred(list(range(SC, SC + 8)), 'v_add_f32', [1, 2, 4], TMP)
    for i in range(8):
        e('v_cvt_pk_bf16_f32 v%d, 0, v%d' % (SC + i, SC + i))
    for i in range(8):
        e('v_mul_f32 v%d, %s, v%d' % (SC + i, f2u(192 ** -0.5), SC + i))
    for i in range(8):
        e('v_cvt_pk_bf16_f32 v%d, 0, v%d' % (SC + i, SC + i))
    e('v_max3_f32 v4, v%d, v%d, v%d' % (SC, SC + 1, SC + 2))
    e('v_max3_f32 v5, v%d, v%d, v%d' % (SC + 3, SC + 4, SC + 5))
    e('v_max3_f32 v4, v4, v%d, v%d' % (SC + 6, SC + 7))
    e('v_max_f32 v4, v4, v5')
    allred([4], 'v_max_f32', [8, 16, 32], TMP)
    for i in range(8):
        e('v_sub_f32 v%d, v%d, v4' % (SC + i, SC + i))
    for i in range(8):
        e('v_mul_f32 v%d, %s, v%d' % (SC + i, f2u(LOG2E), SC + i))
    for i in range(8):
        e('v_exp_f32 v%d, v%d' % (SC + i, SC + i))
    e('v_add_f32 v5, v%d, v%d' % (SC, SC + 1))
    for i in range(2, 8):
        e('v_add_f32 v5, v5, v%d' % (SC + i))
    allred([5], 'v_add_f32', [8, 16, 32], TMP)
    e('s_lshl_b32 s%d, s%d, 3' % (sA, sW))
    e('v_mov_b32 v3, s%d' % sA)
    e('ds_write_b64 v3, v[4:5] offset:%d' % L_ML)

    def woload():
        e('v_lshrrev_b32 v6, 3, v1')
        e('v_mul_u32_u24 v6, 5120, v6')
        e('v_and_b32 v7, 7, v1')
        e('v_lshl_add_u32 v6, v7, 4, v6')
        e('s_mul_i32 s%d, s%d, %d' % (sA, sW, 32 * 1280))
        e('s_cmp_ge_u32 s2, 240')
        e('s_cselect_b32 s%d, 0x40000000, s%d' % (sA, sA))
        e('v_add_u32 v6, s%d, v6' % sA)
        for k in range(4):
            e('buffer_load_dwordx4 %s, v6, %s, 0 offen offset:%d%s' % (vr(WB + 4 * k, 4), srd(SWO), 1280 * k, NTW), 'wo')
        e('v_lshlrev_b32 v7, 1, v0')
        for n, S in enumerate((SW1, SB1, SW2)):
            for k in range(3):
                e('buffer_load_ushort v%d, v7, %s, 0 offen offset:%d' % (QR + 3 * n + k, srd(S), 1024 * k), 'mw')

    WOAT = P.get('woat', 0)
    nissued = NVK
    for i in range(8):
        if nissued < 8:
            kvload(SV, nissued, 'v')
            nissued += 1
        if i == max(WOAT, 7 - NVK):
            woload()
        e('v_cvt_pk_bf16_f32 v%d, v%d, 0' % (TMP, SC + i))
        e('v_cvt_pk_bf16_f32 v%d, 0, v%d' % (TMP + 1, SC + i))
        a.vwait('v%d' % i)
        for n in range(12):
            for hh in range(2):
                d = ACC + 2 * n + hh
                e('v_dot2_f32_bf16 v%d, v%d, v%d, %s' % (d, KV + 12 * i + n, TMP + hh, 'v%d' % d if i else '0'))
    stamp('Vdone')
    for i in range(12):
        e('v_permlane32_swap_b32 v%d, v%d' % (ACC + i, ACC + 12 + i))
    for i in range(12):
        e('v_add_f32 v%d, v%d, v%d' % (ACC + i, ACC + i, ACC + 12 + i))
    for i in range(6):
        e('v_permlane16_swap_b32 v%d, v%d' % (ACC + i, ACC + 6 + i))
    for i in range(6):
        e('v_add_f32 v%d, v%d, v%d' % (ACC + i, ACC + i, ACC + 6 + i))
    e('v_and_b32 v3, 7, v1')
    e('v_mul_u32_u24 v3, 96, v3')
    e('v_lshrrev_b32 v4, 4, v1')
    e('v_mad_u32_u24 v3, v4, 24, v3')
    e('s_mul_i32 s%d, s%d, 768' % (sA, sW))
    e('v_add_u32 v3, s%d, v3' % sA)
    allred(list(range(ACC, ACC + 6)), 'v_add_f32', [8], TMP)
    for i in range(3):
        e('ds_write_b64 v3, %s offset:%d' % (vr(ACC + 2 * i, 2), L_OP + 8 * i))
    e('s_waitcnt lgkmcnt(0)')
    e('s_barrier')
    stamp('B3')
    e('s_cmp_ge_u32 s2, 240')
    e('s_cbranch_scc1 L_stream_end')
    e('s_lshl_b32 s%d, s%d, 3' % (sA, sR))
    e('s_add_u32 s%d, s%d, s%d' % (sA, sA, sW))
    e('s_mul_i32 s%d, s%d, 171' % (sB, sA))
    e('s_lshr_b32 s%d, s%d, 10' % (sB, sB))
    e('s_mul_i32 s%d, s%d, 6' % (sC, sB))
    e('s_sub_u32 s%d, s%d, s%d' % (sA, sA, sC))
    e('s_lshl_b32 s%d, s%d, 7' % (sA, sA))
    e('s_lshl_b32 s%d, s%d, 13' % (sB, sB))
    e('s_add_u32 s%d, s%d, %d' % (sB, sB, OX))
    e('s_add_u32 s%d, s%d, s%d' % (sA, sA, sB))
    e('v_and_b32 v3, 7, v1')
    e('v_lshlrev_b32 v3, 10, v3')
    e('v_lshrrev_b32 v4, 3, v1')
    e('v_lshl_add_u32 v4, v4, 4, v3')
    G0, G1, GT = KV, KV + 4, KV + 8
    poll('h1ml', ['buffer_load_dwordx4 %s, v3, %s, s%d offen offset:768 sc1' % (vr(G1, 4), srd(SWS), sB)], [G1], GT)
    e('v_and_b32 v%d, 0xffff0000, v%d' % (G1, G1))
    e('v_mov_b32 v5, v%d' % G1)
    allred([5], 'v_max_f32', [1, 2, 4], TMP)
    e('v_sub_f32 v5, v%d, v5' % G1)
    e('v_mul_f32 v5, %s, v5' % f2u(LOG2E))
    e('v_exp_f32 v5, v5')
    e('v_mul_f32 v6, v5, v%d' % (G1 + 1))
    allred([6], 'v_add_f32', [1, 2, 4], TMP)
    e('v_rcp_f32 v6, v6')
    e('v_mul_f32 v5, v5, v6')
    for n in range(9):
        e('v_lshlrev_b32 v%d, 16, v%d' % (QR + n, QR + n))
    poll('h1o', ['buffer_load_dwordx4 %s, v4, %s, s%d offen sc1' % (vr(G0, 4), srd(SWS), sA)], [G0], GT)
    stamp('h1')
    for k in range(4):
        e('v_mul_f32 v%d, v5, v%d' % (G0 + k, G0 + k))
    allred(list(range(G0, G0 + 4)), 'v_add_f32', [1, 2, 4], TMP)
    for k in range(4):
        e('v_cvt_pk_bf16_f32 v%d, v%d, 0' % (SC + k, G0 + k))
        e('v_cvt_pk_bf16_f32 v%d, 0, v%d' % (SC + 4 + k, G0 + k))
    for k in range(4):
        for j in range(4):
            e('v_dot2_f32_bf16 v%d, v%d, v%d, %s' % (ACC + 2 * j, WB + 4 * k + j, SC + k, 'v%d' % (ACC + 2 * j) if k else '0'))
            e('v_dot2_f32_bf16 v%d, v%d, v%d, %s' % (ACC + 2 * j + 1, WB + 4 * k + j, SC + 4 + k, 'v%d' % (ACC + 2 * j + 1) if k else '0'))
    e('v_and_b32 v3, 7, v1')
    e('v_lshlrev_b32 v3, 5, v3')
    e('v_lshrrev_b32 v4, 4, v1')
    e('v_lshl_add_u32 v3, v4, 3, v3')
    e('s_lshl_b32 s%d, s%d, 8' % (sA, sW))
    e('v_add_u32 v3, s%d, v3' % sA)
    for i in range(4):
        e('v_permlane32_swap_b32 v%d, v%d' % (ACC + i, ACC + 4 + i))
    for i in range(4):
        e('v_add_f32 v%d, v%d, v%d' % (ACC + i, ACC + i, ACC + 4 + i))
    for i in range(2):
        e('v_permlane16_swap_b32 v%d, v%d' % (ACC + i, ACC + 2 + i))
    for i in range(2):
        e('v_add_f32 v%d, v%d, v%d' % (ACC + i, ACC + i, ACC + 2 + i))
    allred([ACC, ACC + 1], 'v_add_f32', [8], TMP)
    e('ds_write_b64 v3, %s offset:%d' % (vr(ACC, 2), L_YP))
    e('s_waitcnt lgkmcnt(0)')
    e('s_barrier')
    stamp('B4')
    e('s_cmp_ge_u32 s2, 214')
    e('s_cbranch_scc1 L_stream_end')
    e('s_mul_i32 s%d, s2, 12' % sA)
    e('v_mov_b32 v3, s%d' % sA)
    K0 = -2.0 * 0.7978845608028654 * LOG2E
    e('v_mov_b32 v6, %s' % f2u(K0))
    e('s_mov_b32 s%d, %s' % (sB, f2u(K0 * 0.044715)))
    e('s_lshl_b32 s%d, s%d, 4' % (sA, sW))
    e('v_lshrrev_b32 v4, 4, v1')
    e('v_lshl_add_u32 v4, v4, 2, s%d' % sA)
    e('s_barrier')
    stamp('B5')
    for i in range(3):
        e('ds_read_b32 v%d, v3 offset:%d' % (SC + i, L_HN + 4 * i))
    e('s_waitcnt lgkmcnt(0)')
    U, Z = KV, KV + 12
    idx = [(i, k) for i in range(3) for k in range(3)]
    for n, (i, k) in enumerate(idx):
        e('v_fma_f32 v%d, v%d, v%d, v%d' % (U + n, SC + i, QR + k, QR + 3 + k))
    for n in range(9):
        e('v_mul_f32 v%d, v%d, v%d' % (Z + n, U + n, U + n))
    for n in range(9):
        e('v_fma_f32 v%d, v%d, s%d, v6' % (Z + n, Z + n, sB))
    for n in range(9):
        e('v_mul_f32 v%d, v%d, v%d' % (Z + n, Z + n, U + n))
    for n, (i, k) in enumerate(idx):
        e('v_exp_f32 v%d, v%d' % (Z + n, Z + n))
        e('v_mul_f32 v%d, v%d, v%d' % (U + n, U + n, QR + 6 + k))
    for n in range(9):
        e('v_add_f32 v%d, 1.0, v%d' % (Z + n, Z + n))
    for n in range(9):
        e('v_rcp_f32 v%d, v%d' % (Z + n, Z + n))
    e('v_mov_b32 v%d, 0' % (ACC + 3))
    for k in range(3):
        for i in range(3):
            n = 3 * i + k
            if k == 0:
                e('v_mul_f32 v%d, v%d, v%d' % (ACC + i, U + n, Z + n))
            else:
                e('v_fma_f32 v%d, v%d, v%d, v%d' % (ACC + i, U + n, Z + n, ACC + i))
    e('v_permlane32_swap_b32 v%d, v%d' % (ACC, ACC + 2))
    e('v_permlane32_swap_b32 v%d, v%d' % (ACC + 1, ACC + 3))
    e('v_add_f32 v%d, v%d, v%d' % (ACC, ACC, ACC + 2))
    e('v_add_f32 v%d, v%d, v%d' % (ACC + 1, ACC + 1, ACC + 3))
    e('v_permlane16_swap_b32 v%d, v%d' % (ACC, ACC + 1))
    e('v_add_f32 v%d, v%d, v%d' % (ACC, ACC, ACC + 1))
    allred([ACC], 'v_add_f32', [1, 2, 4, 8], TMP)
    e('ds_write_b32 v4, v%d offset:%d' % (ACC, L_RED))
    e('s_waitcnt lgkmcnt(0)')
    e('s_barrier')
    e('L_stream_end:')
    e('s_waitcnt vmcnt(0)')
    if STAMP:
        e('s_cmp_lg_u32 s%d, 0' % sW)
        e('s_cbranch_scc1 L_end')
        dump_stamps(1)
    e('s_endpgm')

    e('L_comm:')
    if P.get('padto', 0) and not P.get('padentry', 0):
        e('s_memrealtime s[98:99]')
    a.vm = []
    stamps.clear()
    stamp('start')
    if P.get('prio', 1):
        e('s_setprio 3')
    VM = 2
    e('v_mov_b32 v%d, 0xfffff800' % VM)
    e('v_and_b32 v3, 15, v1')
    e('v_lshlrev_b32 v3, 2, v3')
    e('v_mov_b32 v4, 0')
    e('ds_write_b32 v3, v4 offset:%d' % L_ML)
    XO, B2R = 160, 162
    e('s_sub_u32 s%d, s2, 236' % sA)
    e('s_lshl_b32 s%d, s%d, 6' % (sA, sA))
    e('s_cmp_ge_u32 s2, 236')
    e('s_cselect_b32 s%d, s%d, 0' % (sA, sA))
    e('v_and_b32 v3, 7, v1')
    e('v_lshlrev_b32 v3, 3, v3')
    e('buffer_load_dwordx2 %s, v3, %s, s%d offen' % (vr(XO, 2), srd(SX), sA))
    e('buffer_load_ushort v%d, v4, %s, 0 offen' % (B2R, srd(SB2)))
    tags()
    e('v_lshlrev_b32 v3, 4, v1')
    e('s_mov_b32 exec_hi, 0xffff')
    e('s_lshl_b32 s%d, s%d, 3' % (sA, sH))
    e('s_mul_i32 s%d, s%d, 768' % (sB, sA))
    e('s_add_u32 s%d, s%d, %d' % (sB, sB, QX))
    e('s_add_u32 s%d, s%d, s%d' % (sA, sA, sS))
    e('s_lshl_b32 s97, s%d, 10' % sA)
    e('s_add_u32 s97, s97, %d' % OX)
    e('s_mul_i32 s%d, s%d, 768' % (sA, sA))
    e('s_add_u32 s%d, s%d, %d' % (sA, sA, QX))
    e('s_barrier')
    stamp('B1')
    R = 8
    for g in range(20):
        e('ds_read_b128 %s, v3 offset:%d' % (vr(R + 4 * g, 4), L_QP + 768 * g))
    e('s_waitcnt lgkmcnt(0)')
    n = 20
    while n > 1:
        hlf = n // 2
        for g in range(hlf):
            for k in (0, 2):
                e('v_pk_add_f32 %s, %s, %s' % (vr(R + 4 * g + k, 2), vr(R + 4 * g + k, 2), vr(R + 4 * (n - 1 - g) + k, 2)))
        n -= hlf
    tagins(R, VM)
    e('buffer_store_dwordx4 %s, v3, %s, s%d offen sc1' % (vr(R, 4), srd(SWS), sA))
    stamp('qpub')
    e('v_add_u32 v5, 3072, v3')
    G = 16
    poll('q', ['buffer_load_dwordx4 %s, v%d, %s, s%d offen offset:%d sc1' % (vr(G + 4 * s, 4), 3 if s < 4 else 5, srd(SWS), sB, 768 * (s % 4))
               for s in range(8)], [G + 4 * s for s in range(8)], 8)
    stamp('qgot')
    n = 8
    while n > 1:
        hlf = n // 2
        for g in range(hlf):
            for k in (0, 2):
                e('v_pk_add_f32 %s, %s, %s' % (vr(G + 4 * g + k, 2), vr(G + 4 * g + k, 2), vr(G + 4 * (n - 1 - g) + k, 2)))
        n -= hlf
    e('v_cvt_pk_bf16_f32 v%d, v%d, v%d' % (G, G, G + 1))
    e('v_cvt_pk_bf16_f32 v%d, v%d, v%d' % (G + 1, G + 2, G + 3))
    e('v_lshlrev_b32 v5, 3, v1')
    e('ds_write_b64 v5, %s offset:%d' % (vr(G, 2), L_QB))
    e('s_waitcnt lgkmcnt(0)')
    e('s_barrier')
    e('s_mov_b64 exec, -1')
    e('v_and_b32 v5, 7, v1')
    e('v_lshlrev_b32 v5, 3, v5')
    e('s_mov_b32 s%d, %d' % (sCNT, SPIN * 4))
    e('L_ml_poll:')
    e('ds_read_b64 v[8:9], v5 offset:%d' % L_ML)
    e('s_waitcnt lgkmcnt(0)')
    e('v_cmp_eq_u32 vcc, 0, v9')
    e('s_cbranch_vccz L_ml_ok')
    e('s_sleep 4')
    e('s_sub_u32 s%d, s%d, 1' % (sCNT, sCNT))
    e('s_cmp_lg_u32 s%d, 0' % sCNT)
    e('s_cbranch_scc1 L_ml_poll')
    e('L_ml_ok:')
    stamp('ml')
    e('v_mov_b32 v12, v8')
    allred([12], 'v_max_f32', [1, 2, 4], TMP)
    e('v_sub_f32 v10, v8, v12')
    e('v_mul_f32 v10, %s, v10' % f2u(LOG2E))
    e('v_exp_f32 v10, v10')
    e('v_mul_f32 v13, v10, v9')
    allred([13], 'v_add_f32', [1, 2, 4], TMP)
    e('v_mov_b32 v14, 0')
    e('v_mov_b32 v15, 0')
    tagins(12, VM)
    e('s_mov_b64 exec, 1')
    e('buffer_store_dwordx4 v[12:15], v3, %s, s97 offen offset:768 sc1' % srd(SWS))
    e('s_mov_b64 exec, -1')
    FW = 4
    for w in range(8):
        e('v_readlane_b32 s%d, v10, %d' % (FW + w, w))
    e('v_mul_u32_u24 v5, 43, v1')
    e('v_lshrrev_b32 v5, 8, v5')
    e('v_mul_u32_u24 v6, 6, v5')
    e('v_sub_u32 v6, v1, v6')
    e('v_lshlrev_b32 v5, 5, v5')
    e('v_and_b32 v7, 1, v6')
    e('v_lshl_add_u32 v5, v7, 4, v5')
    e('v_lshrrev_b32 v6, 1, v6')
    e('v_lshl_add_u32 v5, v6, 8, v5')
    e('s_mov_b32 exec_hi, 0xffff')
    e('s_barrier')
    stamp('B3')
    for w in range(8):
        e('ds_read_b128 %s, v3 offset:%d' % (vr(G + 4 * w, 4), L_OP + 768 * w))
    e('s_waitcnt lgkmcnt(0)')
    for w in range(8):
        base = 8 if w < 4 else 12
        for k in range(4):
            if w % 4 == 0:
                e('v_mul_f32 v%d, s%d, v%d' % (base + k, FW + w, G + 4 * w + k))
            else:
                e('v_fmac_f32 v%d, s%d, v%d' % (base + k, FW + w, G + 4 * w + k))
    for k in range(4):
        e('v_add_f32 v%d, v%d, v%d' % (8 + k, 8 + k, 12 + k))
    tagins(8, VM)
    e('buffer_store_dwordx4 v[8:11], v5, %s, s97 offen sc1' % srd(SWS))
    stamp('opub')
    e('s_cmp_ge_u32 s2, 240')
    e('s_cbranch_scc1 L_owner')
    e('s_mov_b64 exec, 0xffff')
    e('s_mul_i32 s%d, s%d, 24' % (sA, sCB))
    e('s_add_u32 s%d, s%d, s%d' % (sA, sA, sR))
    e('s_lshl_b32 s%d, s%d, 8' % (sA, sA))
    e('s_add_u32 s%d, s%d, %d' % (sA, sA, YX))
    e('s_barrier')
    for w in range(8):
        e('ds_read_b128 %s, v3 offset:%d' % (vr(G + 4 * w, 4), L_YP + 256 * w))
    e('s_waitcnt lgkmcnt(0)')
    n = 8
    while n > 1:
        hlf = n // 2
        for g in range(hlf):
            for k in (0, 2):
                e('v_pk_add_f32 %s, %s, %s' % (vr(G + 4 * g + k, 2), vr(G + 4 * g + k, 2), vr(G + 4 * (n - 1 - g) + k, 2)))
        n -= hlf
    tagins(G, VM)
    e('buffer_store_dwordx4 %s, v3, %s, s%d offen sc1' % (vr(G, 4), srd(SWS), sA))
    stamp('ypub')
    e('s_cmp_lt_u32 s2, 214')
    e('s_cbranch_scc1 L_final')
    e('s_cmp_lt_u32 s2, 236')
    e('s_cbranch_scc1 L_comm_end')
    e('L_owner:')
    e('s_mov_b64 exec, -1')
    e('s_sub_u32 s%d, s2, 236' % sA)
    e('s_lshr_b32 s%d, s%d, 1' % (sB, sA))
    e('s_mul_i32 s%d, s%d, %d' % (sB, sB, 24 * 256))
    e('s_and_b32 s%d, s%d, 1' % (sC, sA))
    e('s_lshl_b32 s%d, s%d, 7' % (sC, sC))
    e('s_add_u32 s%d, s%d, s%d' % (sB, sB, sC))
    e('s_add_u32 s%d, s%d, %d' % (sB, sB, YX))
    e('s_lshl_b32 s%d, s%d, 7' % (sA, sA))
    e('s_add_u32 s%d, s%d, %d' % (sA, sA, HX))
    e('v_lshrrev_b32 v5, 3, v1')
    e('v_lshlrev_b32 v5, 8, v5')
    e('v_and_b32 v6, 7, v1')
    e('v_lshl_add_u32 v5, v6, 4, v5')
    e('v_add_u32 v6, 4096, v5')
    G = 24
    poll('y', ['buffer_load_dwordx4 %s, v5, %s, s%d offen sc1' % (vr(G, 4), srd(SWS), sB),
               'buffer_load_dwordx4 %s, v5, %s, s%d offen offset:2048 sc1' % (vr(G + 4, 4), srd(SWS), sB),
               'buffer_load_dwordx4 %s, v6, %s, s%d offen sc1' % (vr(G + 8, 4), srd(SWS), sB)], [G, G + 4, G + 8], 8)
    st_owner = len(stamps)
    stamp('ygot')
    for k in range(4):
        e('v_add_f32 v%d, v%d, v%d' % (G + k, G + k, G + 4 + k))
    for k in range(4):
        e('v_add_f32 v%d, v%d, v%d' % (G + k, G + k, G + 8 + k))
    allred(list(range(G, G + 4)), 'v_add_f32', [8, 16, 32], 8)
    e('v_lshlrev_b32 v8, 16, v%d' % XO)
    e('v_and_b32 v9, 0xffff0000, v%d' % XO)
    e('v_lshlrev_b32 v10, 16, v%d' % (XO + 1))
    e('v_and_b32 v11, 0xffff0000, v%d' % (XO + 1))
    for k in range(4):
        e('v_cvt_pk_bf16_f32 v%d, 0, v%d' % (G + k, G + k))
    for k in range(4):
        e('v_add_f32 v%d, v%d, v%d' % (G + k, G + k, 8 + k))
    for k in range(4):
        e('v_cvt_pk_bf16_f32 v%d, 0, v%d' % (G + k, G + k))
    for k in range(4):
        e('v_or_b32 v%d, s%d, v%d' % (G + k, T0 + k, G + k))
    e('s_mov_b64 exec, 0xff')
    e('buffer_store_dwordx4 %s, v3, %s, s%d offen sc1' % (vr(G, 4), srd(SWS), sA))
    stamp('hpub')
    e('s_branch L_comm_end')
    e('L_final:')
    del stamps[st_owner:]
    e('s_mov_b64 exec, -1')
    e('v_and_b32 v5, 31, v1')
    e('v_lshlrev_b32 v5, 4, v5')
    e('s_mov_b32 s%d, %d' % (sA, HX))
    G = 24
    poll('h', ['buffer_load_dwordx4 %s, v3, %s, s%d offen sc1' % (vr(G, 4), srd(SWS), sA),
               'buffer_load_dwordx4 %s, v3, %s, s%d offen offset:1024 sc1' % (vr(G + 4, 4), srd(SWS), sA),
               'buffer_load_dwordx4 %s, v5, %s, s%d offen offset:2048 sc1' % (vr(G + 8, 4), srd(SWS), sA)], [G, G + 4, G + 8], 8)
    stamp('hgot')
    for k in range(12):
        e('v_and_b32 v%d, 0xffff0000, v%d' % (G + k, G + k))
    for k in range(3):
        e('ds_write_b128 v%d, %s offset:%d' % (3 if k < 2 else 5, vr(G + 4 * k, 4), L_H + 1024 * k))
    src = G
    for rnd in range(2):
        e('v_add_f32 v8, v%d, v%d' % (src + 8, src + 9))
        e('v_mul_f32 v9, v%d, v%d' % (src + 8, src + 8))
        e('v_add_f32 v10, v%d, v%d' % (src, src + 1))
        e('v_mul_f32 v11, v%d, v%d' % (src, src))
        e('v_add_f32 v8, v8, v%d' % (src + 10))
        e('v_fmac_f32 v9, v%d, v%d' % (src + 9, src + 9))
        e('v_add_f32 v8, v8, v%d' % (src + 11))
        e('v_fmac_f32 v9, v%d, v%d' % (src + 10, src + 10))
        e('v_fmac_f32 v11, v%d, v%d' % (src + 1, src + 1))
        e('v_fmac_f32 v9, v%d, v%d' % (src + 11, src + 11))
        for k in range(2, 8):
            e('v_add_f32 v10, v10, v%d' % (src + k))
            e('v_fmac_f32 v11, v%d, v%d' % (src + k, src + k))
        e('v_fma_f32 v8, v8, 0.5, v10')
        e('v_fma_f32 v9, v9, 0.5, v11')
        allred([8, 9], 'v_add_f32', [1, 2, 4, 8, 16, 32], 10)
        ln_stats(8, 9, 10)
        dst = 40
        for k in range(12):
            e('v_sub_f32 v%d, v%d, v8' % (dst + k, src + k))
        for k in range(12):
            e('v_cvt_pk_bf16_f32 v%d, 0, v%d' % (dst + k, dst + k))
        for k in range(12):
            e('v_mul_f32 v%d, v%d, v9' % (dst + k, dst + k))
        for k in range(12):
            e('v_cvt_pk_bf16_f32 v%d, 0, v%d' % (dst + k, dst + k))
        src = dst
    for k in range(3):
        e('ds_write_b128 v%d, %s offset:%d' % (3 if k < 2 else 5, vr(src + 4 * k, 4), L_HN + 1024 * k))
    e('s_waitcnt lgkmcnt(0)')
    e('s_barrier')
    stamp('B5')
    e('s_cmp_lg_u32 s2, 0')
    e('s_cbranch_scc1 L_noep')
    e('s_add_u32 s%d, s%d, 1' % (sA, sE))
    e('v_mov_b32 v8, s%d' % sA)
    e('s_mov_b64 exec, 1')
    e('buffer_store_dword v8, v3, %s, 0 offen' % srd(SWS))
    e('L_noep:')
    e('s_mov_b64 exec, 7')
    e('s_mul_i32 s%d, s2, 3' % sA)
    e('v_add_u32 v6, s%d, v1' % sA)
    e('v_lshlrev_b32 v7, 2, v6')
    e('ds_read_b32 v20, v7 offset:%d' % L_H)
    e('v_lshlrev_b32 v6, 1, v6')
    e('v_lshlrev_b32 v5, 2, v1')
    e('v_lshlrev_b32 v%d, 16, v%d' % (B2R, B2R))
    e('s_barrier')
    for w in range(0, 8, 2):
        e('ds_read_b32 v%d, v5 offset:%d' % (8 + w, L_RED + 16 * w))
        e('ds_read_b32 v%d, v5 offset:%d' % (9 + w, L_RED + 16 * w + 16))
    e('s_waitcnt lgkmcnt(0)')
    for k in range(4):
        e('v_add_f32 v%d, v%d, v%d' % (8 + k, 8 + k, 12 + k))
    e('v_add_f32 v8, v8, v10')
    e('v_add_f32 v9, v9, v11')
    e('v_add_f32 v8, v8, v9')
    e('v_cvt_pk_bf16_f32 v8, 0, v8')
    e('v_add_f32 v8, v8, v%d' % B2R)
    e('v_cvt_pk_bf16_f32 v8, 0, v8')
    e('v_add_f32 v8, v8, v20')
    e('v_cvt_pk_bf16_f32 v8, v8, 0')
    e('buffer_store_short v8, v6, %s, 0 offen' % srd(SOUT))
    stamp('out')
    e('L_comm_end:')
    if P.get('padto', 0):
        if P.get('padwg', -1) >= 0:
            e('s_cmp_lg_u32 s2, %d' % P['padwg'])
            e('s_cbranch_scc1 L_pad_ok')
        e('s_mov_b32 s%d, 100000' % sCNT)
        e('L_pad:')
        e('s_memrealtime s[100:101]')
        e('s_waitcnt lgkmcnt(0)')
        e('s_sub_u32 s100, s100, s98')
        e('s_cmp_ge_u32 s100, %d' % P['padto'])
        e('s_cbranch_scc1 L_pad_ok')
        e('s_sub_u32 s%d, s%d, 1' % (sCNT, sCNT))
        e('s_cmp_lg_u32 s%d, 0' % sCNT)
        e('s_cbranch_scc1 L_pad')
        e('L_pad_ok:')
    dump_stamps(0)
    e('L_end:')
    e('s_endpgm')

    ref = open('cdna_kernels/%s.s.ref' % NAME).read().split('\n')
    head = [l for l in ref if l.startswith(';') and '@launch grid' not in l]
    out = '\n'.join(head) + '\n'
    for sl in sorted(stampnames):
        out += '; stamps %d: %s\n' % (sl, ' '.join(stampnames[sl]))
    out += '; @launch grid=(256,1,1) block=(576,1,1) lds=%d\n' % LDS_SIZE
    out += '.amdgcn_target "amdgcn-amd-amdhsa--gfx950"\n.text\n.globl %s_kernel\n.p2align 8\n.type %s_kernel,@function\n%s_kernel:\n' % (NAME, NAME, NAME)
    out += a.text()
    out += '''.section .rodata,"a"
.p2align 6
.amdhsa_kernel %s_kernel
  .amdhsa_next_free_vgpr %d
  .amdhsa_next_free_sgpr 102
  .amdhsa_accum_offset %d
  .amdhsa_group_segment_fixed_size 0
  .amdhsa_kernarg_size 104
  .amdhsa_user_sgpr_count 2
  .amdhsa_user_sgpr_kernarg_segment_ptr 1
  .amdhsa_system_sgpr_workgroup_id_x 1
.end_amdhsa_kernel
''' % (NAME, NV, NV)
    return out


if __name__ == '__main__':
    P = {}
    outp = 'cdna_kernels/%s.s' % NAME
    for arg in sys.argv[1:]:
        k, v = arg.split('=')
        if k == 'out':
            outp = v
        else:
            P[k] = int(v, 0)
    for x in range(192):
        assert (x * 171) >> 10 == x // 6
    for x in range(256):
        assert (x * 205) >> 11 == x // 10
    for x in range(512):
        assert (x * 2731) >> 16 == x // 24
    for x in range(48):
        assert (x * 43) >> 8 == x // 6
    open(outp, 'w').write(gen(P))
```
